```python
import torch

def _softmax(x, axis=-1):
    return torch.softmax(x, dim=axis)

def _gelu(x):
    return torch.nn.functional.gelu(x, approximate='tanh')

def _silu(x):
    return torch.nn.functional.silu(x)

def _sigmoid(x):
    return torch.sigmoid(x)

def _layernorm(x, axis=-1, eps=1e-05):
    m = x.mean(dim=axis, keepdim=True)
    v = x.var(dim=axis, keepdim=True, unbiased=False)
    return (x - m) / torch.sqrt(v + eps)

def _scatter_add(tgt, idx, src, axis=0):
    return tgt.clone().index_add_(axis, idx, src)

def _segment_sum(src, seg, n):
    out = torch.zeros((n,) + src.shape[1:], dtype=src.dtype)
    return out.index_add_(0, seg, src)

def _pad(x, pw):
    flat = tuple((v for pair in reversed(pw) for v in pair))
    return torch.nn.functional.pad(x, flat)
kernel_name = 'parallel_sum__compressed_kv_cla__mixer_gmlp__prompt'

def setup_inputs():

    _w = lambda a: (lambda t: t.to(torch.bfloat16) if t.is_floating_point() else t)(torch.as_tensor(a))

    def _A_setup():
        B, H, Sq, Sk, D, M = (1, 32, 2048, 2048, 128, 576)
        Dc = 4 * D
        return {'x': _w((lambda *s: torch.randn(*s, dtype=torch.bfloat16) * 0.05)(B, Sq, M)), 'c_kv': _w((lambda *s: torch.randn(*s, dtype=torch.bfloat16) * 1.6)(B, Sk, Dc)), 'w_q': _w((lambda *s: torch.randn(*s, dtype=torch.bfloat16) * 1.6)(M, H, D) * M ** (-0.5)), 'w_uk': _w((lambda *s: torch.randn(*s, dtype=torch.bfloat16) * 1.6)(Dc, H, D) * Dc ** (-0.5)), 'w_uv': _w((lambda *s: torch.randn(*s, dtype=torch.bfloat16) * 1.6)(Dc, H, D) * Dc ** (-0.5)), 'w_o': _w((lambda *s: torch.randn(*s, dtype=torch.bfloat16) * 1.6)(H, D, M) * (H * D) ** (-0.5))}
    _A_in = _A_setup()

    def _B_setup():
        B, S, D, F = (1, 2048, 576, 4608)
        Fh = F // 2
        return {'x': _w((lambda *s: torch.randn(*s, dtype=torch.bfloat16) * 0.05)(B, S, D)), 'w_in': _w((lambda *s: torch.randn(*s, dtype=torch.bfloat16) * 0.4)(D, 2 * Fh)), 'w_sp': _w(0.01 * (lambda *s: torch.randn(*s, dtype=torch.bfloat16) * 0.4)(S, S)), 'b_sp': _w(1.0 + 0.01 * (lambda *s: torch.randn(*s, dtype=torch.bfloat16) * 0.05)(S)), 'w_out': _w((lambda *s: torch.randn(*s, dtype=torch.bfloat16) * 0.05)(Fh, D))}
    _B_in = _B_setup()
    return {'A_x': _A_in['x'], 'A_c_kv': _A_in['c_kv'], 'A_w_q': _A_in['w_q'], 'A_w_uk': _A_in['w_uk'], 'A_w_uv': _A_in['w_uv'], 'A_w_o': _A_in['w_o'], 'B_x': _B_in['x'], 'B_w_in': _B_in['w_in'], 'B_w_sp': _B_in['w_sp'], 'B_b_sp': _B_in['b_sp'], 'B_w_out': _B_in['w_out']}

def reference(A_x, A_c_kv, A_w_q, A_w_uk, A_w_uv, A_w_o, B_x, B_w_in, B_w_sp, B_b_sp, B_w_out):

    def _A_ref(x, c_kv, w_q, w_uk, w_uv, w_o):
        B, Sq, M = (x.shape[0], x.shape[1], x.shape[2])
        Sk = c_kv.shape[1]
        H, D = (w_q.shape[1], w_q.shape[2])
        q = torch.einsum('bqm,mhd->bhqd', x, w_q)
        k = torch.einsum('bkc,chd->bhkd', c_kv, w_uk)
        v = torch.einsum('bkc,chd->bhkd', c_kv, w_uv)
        scores = torch.einsum('bhqd,bhkd->bhqk', q, k) * D ** (-0.5)
        off = Sk - Sq
        qi = torch.arange(Sq)[:, None]
        kj = torch.arange(Sk)[None, :]
        cmask = kj <= qi + off
        scores = torch.where(cmask[None, None], scores, -1000000000.0)
        p = _softmax(scores, axis=-1)
        ctx = torch.einsum('bhqk,bhkd->bhqd', p, v)
        return torch.einsum('bhqd,hdm->bqm', ctx, w_o)

    def _B_ref(x, w_in, w_sp, b_sp, w_out):
        B, S, D = x.shape
        F = w_in.shape[-1]
        Fh = F // 2
        z = _gelu(torch.einsum('bsd,df->bsf', x, w_in))
        z1 = z[..., :Fh].clone()
        z2 = _layernorm(z[..., Fh:], axis=-1)
        g = torch.einsum('ts,bsf->btf', w_sp, z2) + b_sp[None, :, None]
        return torch.einsum('bsf,fd->bsd', z1 * g, w_out)
    x = A_x
    xn = _layernorm(x, axis=-1)
    return x + _A_ref(xn, A_c_kv, A_w_q, A_w_uk, A_w_uv, A_w_o) + _B_ref(xn, B_w_in, B_w_sp, B_b_sp, B_w_out)
```

```python
from asmlib import *
from gemmlib import *
import gen, hazcheck
from gen import *

VS = lambda par, kb, qb: 64 + 32*par + 16*kb + 4*qb
VP = lambda par, qb: 128 + 16*par + 4*qb
VNM = lambda qb: 160 + 4*qb
VL = lambda par, qb: 176 + 4*par + qb
VQ = lambda qb, t: 192 + 16*qb + 4*t
VT = 8
VPM1, VP0, VPP1, VL16, VDMA = 2, 3, 4, 5, 6
AO = lambda db, qb: 16*db + 4*qb
AK = lambda kb, t: 128 + 16*kb + 4*t
AV = lambda db: 160 + 4*db
S_WAVE, S_J, S_H, S_U, S_UM, S_UEND, S_THR = 30, 31, 32, 33, 34, 35, 36
S_SLC, S_SLB, S_SLA, S_M0, S_KVOFF, S_W8K, S_TMP, S_CB, S_CS = 37, 38, 39, 40, 41, 42, 43, 44, 45
S_MASK = 46
SRD_KV, SRD_WQ, SRD_XN, SRD_Y = 12, 16, 20, 24
NEG_INF = "0xff800000"
QSCALE = 1.4426950408889634 / (128 ** 0.5)

def mf(d, x, y, c): return f"v_mfma_f32_16x16x32_bf16 {d}, {x}, {y}, {c}"

def qk_mfmas(par, qbs, first=False):
    out = []
    for t in range(4):
        for kb in range(2):
            for qb in qbs:
                d = v(VS(par, kb, qb), 4)
                c = d if t else ("0" if first else v(VNM(qb), 4))
                out.append(mf(d, a(AK(kb, t), 4), v(VQ(qb, t), 4), c))
    return out
def pv_mfmas(par, qbs):
    return [mf(a(AO(db, qb), 4), a(AV(db), 4), v(VP(par, qb), 4), a(AO(db, qb), 4)) for db in range(8) for qb in qbs]
def k_reads(par):
    return [f"ds_read_b128 {a(AK(kb, t), 4)}, {v(VPP1)} offset:{16384*par + (4*kb+t)*1024}" for t in range(4) for kb in range(2)]
def v_reads(par):
    base, off = (VPM1, 16384+8192) if par == 0 else (VP0, 8192)
    return [f"ds_read_b128 {a(AV(db), 4)}, {v(base)} offset:{off + db*1024}" for db in range(8)]

ABL = []
MS = [2, 3]
VL4 = lambda par, qb: 32 + 16*par + 4*qb
AONE = 192
VX0 = 30
def LR(par, qb): return VL4(par, qb) if qb in MS else VL(par, qb)
RDF = 5
QRATE = 7
QUP = 24
AH = 3
DMACOST = 1
DBG = False
SLACK = 8
NT = 6
NE = 4
def sm_pairs(qbs):
    order = [q for q in (2, 3, 0, 1) if q in qbs]
    return [(qb, kb, p) for qb in order for kb in range(2) for p in range(2)]
def exp_text(par, k2, qbs):
    qb, kb, p = sm_pairs(qbs)[k2//2]
    return f"v_exp_f32 {v(VT + 2*((k2//2) % NT) + k2 % 2)}, {v(VS(par, kb, qb) + 2*p + k2 % 2)}"
def early_exps(par):
    return [exp_text(par, k, [2, 3]) for k in range(NE)]
def sm_streams(par, qbs, n, pos):
    pairs = sm_pairs(qbs)
    m = len(pairs)
    lastq = pairs[-1][0]
    end = (n - 5) if lastq not in MS else (pos[lastq] - 2)
    ex, rs = [], []
    last_rest = {}
    step = end/(m - NE/2.0 + 0.5)
    for k, (qb, kb, p) in enumerate(pairs):
        t = VT + 2*(k % NT)
        due = (k - NE/2.0)*step
        dep = [last_rest[k-NT]] if k >= NT else []
        e0 = e1 = None
        if 2*k >= NE:
            e0 = Item(exp_text(par, 2*k, qbs), 2, due, lo=int(due - AH), after=dep); ex.append(e0)
        if 2*k+1 >= NE:
            e1 = Item(exp_text(par, 2*k+1, qbs), 2, due + 0.5*step, lo=int(due + 0.5*step - AH)); ex.append(e1)
        src = VL(par ^ 1, qb) if (kb == 0 and p == 0) else VL(par, qb)
        d2 = due + 1.0*step
        r1 = Item(f"v_cvt_pk_bf16_f32 {v(VP(par, qb)+2*kb+p)}, {v(t)}, {v(t+1)}", 1, d2, aftersep=[x for x in (e0, e1) if x])
        if qb in MS:
            r1.hi = pos[qb] - 2
            rs += [r1]; last_rest[k] = r1
        else:
            r0 = Item(f"v_add_f32 {v(VL(par, qb))}, {v(src)}, {v(t)}", 1, d2 - 0.6, aftersep=[e0] if e0 else [])
            r2 = Item(f"v_add_f32 {v(VL(par, qb))}, {v(VL(par, qb))}, {v(t+1)}", 1, d2 + 0.1)
            rs += [r0, r1, r2]
            last_rest[k] = r2
    T = VT + 2*NT
    fin = []
    ready = lambda qb: (pos[qb] + MSD) if qb in MS else 0
    if len(qbs) == 4:
        lo = max(ready(q) for q in (2, 3, 0))
        fin.append(Item(f"v_max3_f32 {v(T)}, {v(LR(par,2))}, {v(LR(par,3))}, {v(LR(par,0))}", 1, lo, lo=lo, after=[last_rest[11]]))
        fin.append(Item(f"v_max_f32 {v(T)}, {v(T)}, {v(LR(par,1))}", 1, 0, lo=ready(1), after=[last_rest[15]]))
    else:
        fin.append(Item(f"v_max_f32 {v(T)}, {v(LR(par,2))}, {v(LR(par,3))}", 1, 0, lo=ready(3), after=[last_rest[7]]))
    fin.append(Item(f"v_cmp_lt_f32 vcc, {s(S_THR)}, {v(T)}", 1, 0))
    return ex, rs, fin, last_rest
MSD = 4

def rotate_items():
    return [(f"v_mov_b32 {v(VPM1)}, {v(VP0)}", 1), (f"v_mov_b32 {v(VP0)}, {v(VPP1)}", 1)]
def rotate_items2():
    return [(f"v_add_u32 {v(VPP1)}, {s(S_SLA)}, {v(VL16)}", 1),
            (f"s_mov_b32 {s(S_SLA)}, {s(S_SLB)}", 1), (f"s_mov_b32 {s(S_SLB)}, {s(S_SLC)}", 1),
            (f"s_add_u32 {s(S_SLC)}, {s(S_SLC)}, 32768", 1), (f"s_cmp_eq_u32 {s(S_SLC)}, 163840", 1),
            (f"s_cselect_b32 {s(S_SLC)}, 0, {s(S_SLC)}", 1)]

def dma_items(par):
    it = [(f"s_add_u32 m0, {s(S_SLB)}, {s(S_W8K)}", 1)] if par == 0 else [("s_add_u32 m0, m0, 4096", 1)]
    for j in range(4):
        off = f" offset:{1024*j}" if j else ""
        it.append((f"buffer_load_dwordx4 {v(VDMA)}, {s(SRD_KV,4)}, {s(S_KVOFF)} offen{off} lds", DMACOST, 'sep' if j == 0 else ''))
    it.append((f"s_add_u32 {s(S_KVOFF)}, {s(S_KVOFF)}, {4096 if par == 0 else 32768-4096}", 1))
    return it

class Att:
    def __init__(self, A):
        self.A = A
        self.ool = []
    def body(self, par, qbs, doQK, doSM, doPV, dma, tag, maskcheck, bar=False, early=True):
        m1 = qk_mfmas(par ^ 1, qbs) if doQK else []
        m2 = pv_mfmas(par ^ 1, qbs) if doPV else []
        order = [q for q in (2, 3, 0, 1) if q in qbs]
        msq = [q for q in order if q in MS] if doSM else []
        ntot = len(m1) + len(m2) + len(msq)
        save = list(self.ool)
        global MSD
        for E, MSD in [(E, d) for E in range(max(4, ntot - SLACK), ntot + 1) for d in (4, 5, 6, 7, 8)]:
            pos = {}
            for q in msq:
                k = order.index(q)
                p = int((k + 1 - NE/8.0)/(len(order) - NE/8.0)*E) + (1 if k == len(order)-1 else 5)
                pos[q] = min(ntot - len(msq) + msq.index(q), p)
            self.ool = list(save)
            try:
                lines = self.body2(par, qbs, m1, m2, pos, doSM, dma, tag, maskcheck, bar, early, E >= ntot)
            except AssertionError as e:
                if DBG: print(tag, E, pos, "assert", e)
                continue
            hz = hazcheck.check(lines)
            if hz:
                if DBG: print(tag, E, pos, hz[0])
                continue
            break
        else:
            raise RuntimeError("cannot schedule " + tag)
        for x in lines:
            if x.endswith(":"): self.A.label(x[:-1])
            else: self.A.e(x)
    def body2(self, par, qbs, m1, m2, pos, doSM, dma, tag, maskcheck, bar, early, relax):
        doQK, doPV = bool(m1), bool(m2)
        ml = list(m1 + m2)
        n1 = len(m1)
        for q, p in sorted(pos.items(), key=lambda x: x[1]):
            ml.insert(p, mf(v(VL4(par, q), 4), a(AONE, 4), v(VP(par, q), 4), v(VL4(par ^ 1, q), 4)))
            if p < n1 or (p == n1 and not m2): n1 += 1
        n = len(ml)
        n2 = n - n1
        pre, post = [], []
        sts = []
        if doPV:
            rd = [(x, 1) for x in v_reads(par)]
            if n1:
                vr = stream(rd, 0, (n1*RDF)//8, ahead=AH)
                vr.append(Item("s_waitcnt lgkmcnt(0)", 1, n1-1, lo=n1-1, hi=n1-1))
                sts.append(vr)
            else: pre = [x[0] for x in rd] + ["s_waitcnt lgkmcnt(0)"]
        salu = []
        X = 0
        if bar:
            salu += [Item("s_waitcnt vmcnt(8)", 1, 0), Item("s_barrier", 1, 1, sep=True)]
            X = 2
        if par == 0:
            X2 = max(X + 6, n1//2)
            salu += stream(rotate_items2(), X, X2)
            rot0 = salu[-6]
            X = X2
        mk = None
        rest = dma_items(par) if dma else []
        salu += stream(rest, X, max(X+1, n - 8), ahead=2)
        if salu: sts.append(salu)
        if maskcheck:
            lo = min(n1 + 9, n - 1)
            if maskcheck == 'B':
                mk = [Item(f"s_add_u32 {s(S_U)}, {s(S_U)}, 1", 1, lo-1, lo=lo-1),
                      Item([f"s_cmp_ge_u32 {s(S_U)}, {s(S_UM)}", f"s_cbranch_scc1 mask_{tag}", f"maskret_{tag}:"], 2, lo, lo=lo)]
                self.ool.append(lambda: self.mask_block(par ^ 1, tag))
            else:
                mk = [Item([f"s_cmp_eq_u32 {s(S_CS)}, 0", f"s_cbranch_scc1 mask_{tag}", f"maskret_{tag}:"], 2, lo, lo=lo)]
                self.ool.append(lambda: self.mask_block_s(par ^ 1, tag))
            if par == 0: mk[0].after.append(rot0); mk[0].after.append(salu[salu.index(rot0)+5])
            sts.append(mk)
        if doQK:
            if n2:
                kr = stream([(x, 1) for x in k_reads(par)], n1, n1 + (n2*RDF)//8, ahead=AH)
                if par == 0: kr[0].after.append(rot0)
                kr.append(Item("s_waitcnt lgkmcnt(0)", 1, n-1, lo=n-1))
                sts.append(kr)
            else: post = k_reads(par) + ["s_waitcnt lgkmcnt(0)"]
        if par == 1 and n:
            mv = [Item(x[0], 1, n - 6, lo=n1 + (n2*RDF)//8) for x in rotate_items()]
            if doQK and n2: mv[1].after.append(kr[-2])
            sts.append(mv)
        if doSM:
            ex, rs, fin, last_rest = sm_streams(par, qbs, n, pos)
            if relax:
                for x in rs: x.hi = None
            if early and doQK and n2:
                m = len(sm_pairs(qbs))
                for k, x in enumerate(early_exps(par ^ 1)):
                    kk = max(q for q in range(m) if q % NT == (k//2) % NT)
                    e0g = (max(pos.values()) if pos else n - NE - 1)
                    dd = e0g + k*(n - 1 - e0g)/NE
                    ex.append(Item(x, 2, dd, lo=max(n1 + 9, int(dd - AH)), after=[last_rest[kk]] + ([mk[-1]] if mk else [])))
            sts += [ex, rs, fin]
            br = Item([f"s_cbranch_vccnz fb_{tag}", f"fbret_{tag}:"], 1, n+1, lo=n-1, after=[fin[-1], ex[-1]])
            sts.append([br])
            self.ool.append(lambda: self.fallback(par, qbs, doQK, tag, early and doQK and n2))
        gaps = schedule(n, sts)
        if ABL:
            def keep(x):
                for k in ABL:
                    if x.startswith(k): return False
                return True
            gaps = [[x for x in g if keep(x)] for g in gaps]
        if relax and pos:
            flatl = []
            for i, m in enumerate(ml):
                flatl.append(m if i not in pos.values() else "s_nop 0")
                flatl += gaps[i]
            cut = next(i for i, x in enumerate(flatl) if x.startswith("v_max"))
            head = [x for x in flatl if not (x.startswith("v_max") or x.startswith("v_cmp") or x.startswith("s_cbranch_vccnz") or x.startswith("fbret"))]
            tail = [x for x in flatl if (x.startswith("v_max") or x.startswith("v_cmp") or x.startswith("s_cbranch_vccnz") or x.startswith("fbret"))]
            return pre + head + ["s_nop 1"] + [ml[p] for p in sorted(pos.values())] + ["s_nop 7"] + tail + post
        out = list(pre)
        for i, m in enumerate(ml):
            out.append(m); out += gaps[i]
        return out + post
    def mask_diag(self, par, grp):
        A = self.A
        for ql in range(2):
            qb = 2*grp + ql
            for i in range(4):
                r = VS(par, ql, qb) + i
                A.e(f"v_cndmask_b32 {v(r)}, {v(r)}, {v(VT+13)}, {s(S_MASK+2*i,2)}")
        for i in range(4):
            A.e(f"v_mov_b32 {v(VS(par, 1, 2*grp)+i)}, {NEG_INF}")
    def mask_block(self, par, tag):
        A = self.A
        A.label(f"mask_{tag}")
        A.e(f"v_mov_b32 {v(VT+13)}, {NEG_INF}")
        A.e(f"s_cmp_eq_u32 {s(S_U)}, {s(S_UM)}")
        A.e(f"s_cbranch_scc0 mask2_{tag}")
        self.mask_diag(par, 0)
        A.e(f"s_branch maskret_{tag}")
        A.label(f"mask2_{tag}")
        for kb in range(2):
            for qb in range(2):
                for i in range(4): A.e(f"v_mov_b32 {v(VS(par, kb, qb)+i)}, {NEG_INF}")
        A.e(f"s_cmp_eq_u32 {s(S_WAVE)}, 3")
        A.e(f"s_cbranch_scc0 maskret_{tag}")
        self.mask_diag(par, 1)
        A.e(f"s_branch maskret_{tag}")
    def mask_block_s(self, par, tag):
        A = self.A
        A.label(f"mask_{tag}")
        A.e(f"v_mov_b32 {v(VT+13)}, {NEG_INF}")
        self.mask_diag(par, 1)
        A.e(f"s_branch maskret_{tag}")
    def rowmax(self, par, qb, d, t):
        A = self.A
        r0, r1 = VS(par, 0, qb), VS(par, 1, qb)
        A.e(f"v_max3_f32 {v(d)}, {v(r0)}, {v(r0+1)}, {v(r0+2)}")
        A.e(f"v_max3_f32 {v(d)}, {v(d)}, {v(r0+3)}, {v(r1)}")
        A.e(f"v_max3_f32 {v(d)}, {v(d)}, {v(r1+1)}, {v(r1+2)}")
        A.e(f"v_max_f32 {v(d)}, {v(d)}, {v(r1+3)}")
    def fallback(self, par, qbs, doQK, tag, early):
        A = self.A
        A.label(f"fb_{tag}")
        A.e("s_nop 7")
        A.e("s_nop 7")
        d, f, t = VT+14, VT+15, VT+16
        for qb in qbs:
            self.rowmax(par, qb, d, t)
            A.e(f"v_log_f32 {v(t)}, {v(LR(par^1, qb))}")
            A.e("s_nop 0")
            A.e(f"v_max3_f32 {v(d)}, {v(d)}, {v(t)}, 0")
            reduce_g(A, d, t, "v_max_f32")
            A.e(f"v_exp_f32 {v(f)}, -{v(d)}")
            A.e("s_nop 0")
            if qb in MS: A.e(f"v_mov_b32 {v(VL(par, qb))}, 0")
            else: A.e(f"v_mul_f32 {v(VL(par, qb))}, {v(VL(par^1, qb))}, {v(f)}")
            for kb in range(2):
                for p in range(2):
                    r = VS(par, kb, qb) + 2*p
                    A.e(f"v_sub_f32 {v(t)}, {v(r)}, {v(d)}")
                    A.e(f"v_sub_f32 {v(t+1)}, {v(r+1)}, {v(d)}")
                    A.e(f"v_exp_f32 {v(t)}, {v(t)}")
                    A.e(f"v_exp_f32 {v(t+1)}, {v(t+1)}")
                    A.e("s_nop 0")
                    A.e(f"v_add_f32 {v(VL(par, qb))}, {v(VL(par, qb))}, {v(t)}")
                    A.e(f"v_add_f32 {v(VL(par, qb))}, {v(VL(par, qb))}, {v(t+1)}")
                    A.e(f"v_cvt_pk_bf16_f32 {v(VP(par, qb)+2*kb+p)}, {v(t)}, {v(t+1)}")
            if qb in MS:
                reduce_g(A, VL(par, qb), t)
                for i in range(4): A.e(f"v_fma_f32 {v(VL4(par, qb)+i)}, {v(VL4(par^1, qb))}, {v(f)}, {v(VL(par, qb))}")
            if doQK:
                for kb in range(2):
                    for i in range(4):
                        r = VS(par ^ 1, kb, qb) + i
                        A.e(f"v_sub_f32 {v(r)}, {v(r)}, {v(d)}")
            for i in range(4):
                A.e(f"v_sub_f32 {v(VNM(qb)+i)}, {v(VNM(qb)+i)}, {v(d)}")
            for db in range(8):
                for i in range(4): A.e(f"v_accvgpr_read_b32 {v(t+i)}, {a(AO(db, qb)+i)}")
                for i in range(4): A.e(f"v_mul_f32 {v(t+i)}, {v(t+i)}, {v(f)}")
                for i in range(4): A.e(f"v_accvgpr_write_b32 {a(AO(db, qb)+i)}, {v(t+i)}")
        if early: A.es(early_exps(par ^ 1))
        A.e("s_nop 1")
        A.e(f"s_branch fbret_{tag}")

def attn_task(A, wsp, wqp, slot):
    T = Att(A)
    srd_ws(A, SRD_KV, wsp, WS_KV, SZ_KV)
    A.srd(SRD_WQ, wqp, 576*4096*2)
    srd_ws(A, SRD_XN, wsp, WS_XN, SZ_XN)
    srd_ws(A, SRD_Y, wsp, WS_Y, SZ_Y)
    S_WOFF, S_XOFF, S_M0W, S_ZERO = 54, 55, 56, 57
    opW = OpTr("W", 256, 8192, 'nat', 8, 8, 98304, SRD_WQ, S_WOFF, 32, 34)
    opX = OpReg("X", 4, 4, SRD_XN, S_XOFF, [(VX0, 0), (VX0, 1024), (VX0+1, 0), (VX0+1, 1024)], 131072, 'a', 192)
    opX.loc = lambda u: ('a', 16*u) if u < 8 else ('a', 192+16*(u-8)) if u < 12 else ('v', 192+16*(u-12)) if u < 16 else ('a', 192+16*(u-16))
    opX.free = lambda u: -1 if u < 16 else u - 7
    A.e(f"s_lshl_b32 {s(S_WOFF)}, {s(S_H)}, 8")
    A.e(f"s_mov_b32 {s(S_XOFF)}, 0")
    A.e(f"s_lshl_b32 {s(S_M0W)}, {s(S_WAVE)}, 11")
    A.e(f"s_mov_b32 {s(S_ZERO)}, 0")
    A.e(f"v_lshlrev_b32 {v(VL16)}, 4, v1")
    A.e(f"s_lshl_b32 {s(S_TMP)}, {s(S_J)}, 3")
    A.e(f"s_add_u32 {s(S_UM)}, {s(S_TMP)}, {s(S_WAVE)}")
    A.e(f"s_add_u32 {s(S_UEND)}, {s(S_TMP)}, 2")
    A.e(f"s_add_u32 {s(S_TMP)}, {s(S_TMP)}, 7")
    A.e(f"s_sub_u32 {s(S_TMP)}, {s(S_TMP)}, {s(S_WAVE)}")
    A.e(f"s_lshl_b32 {s(S_TMP)}, {s(S_TMP)}, 11")
    A.e(f"v_add_u32 v31, {s(S_TMP)}, {v(VL16)}")
    A.e(f"s_lshl_b32 {s(S_TMP)}, {s(S_UM)}, 11")
    A.e(f"v_add_u32 v30, {s(S_TMP)}, {v(VL16)}")
    A.e(f"s_lshl_b32 {s(S_W8K)}, {s(S_WAVE)}, 13")
    A.e(f"v_add_u32 {v(VDMA)}, {s(S_W8K)}, {v(VL16)}")
    A.e(f"s_lshl_b32 {s(S_KVOFF)}, {s(S_H)}, 20")
    if gen.ROT:
        A.e(f"s_and_b32 s58, {s(S_H)}, 3")
        A.e(f"s_add_u32 s58, s58, {s(S_J)}")
        A.e("s_cmp_ge_u32 s58, 6")
        A.e("s_cselect_b32 s59, 6, 0")
        A.e("s_sub_u32 s58, s58, s59")
        rot_setup(A, opW, 6, 90, 58, S_TMP)
        rot_setup(A, opX, 6, 96, 58, S_TMP)
    opW.setup(A, 1, S_WAVE, S_ZERO, VT, S_TMP)
    accq = lambda i, j: v(64 + 16*i + 4*j, 4)
    Gq = Gemm(18, opW, opX, accq, 128, 0, S_M0W, None, rate=lambda h: QRATE, P=2)
    stamp(A, 1)
    A.es(Gq.prologue_issue(QUP))
    A.e(f"v_and_b32 {v(VT)}, 15, v1")
    A.e(f"v_lshrrev_b32 {v(VT+1)}, 4, v1")
    A.e(f"v_lshlrev_b32 {v(VT+1)}, 2, {v(VT+1)}")
    for i in range(4):
        A.e(f"v_cmp_gt_u32 {s(S_MASK+2*i,2)}, {v(VT+1)}, {v(VT)}")
        A.e(f"v_add_u32 {v(VT+1)}, 1, {v(VT+1)}")
    A.e(f"s_mov_b32 {s(S_THR)}, 0x53800000")
    A.e(f"s_mov_b32 {s(S_U)}, 0")
    A.es(Gq.prologue_wait())
    stamp(A, 2)
    pre = []
    for p in range(3):
        for hf in range(2):
            it = [(f"s_add_u32 m0, {s(S_W8K)}, {32768*p + 4096*hf}", 1)]
            for j in range(4):
                off = f" offset:{1024*j}" if j else ""
                it.append((f"buffer_load_dwordx4 {v(VDMA)}, {s(SRD_KV,4)}, {s(S_KVOFF)} offen{off} lds", 1, 'sep' if j == 0 else '', 'dma', ('KV', p)))
            it.append((f"s_add_u32 {s(S_KVOFF)}, {s(S_KVOFF)}, {4096 if hf == 0 else 32768-4096}", 1))
            pre.append(it)
    zero = [(f"v_accvgpr_write_b32 {a(r)}, 0", 1) for r in range(128)]
    for h in range(18):
        ed = None
        if h >= 12 and pre and not any(x[0].endswith(" lds") for x in Gq.pending):
            ed = pre.pop(0)
            if h >= 15 and pre: ed = ed + pre.pop(0)
        ez = zero[13*(h-8): 13*(h-8)+13] if h >= 8 else None
        A.es(Gq.step(h, extra=ez, extra_dma=ed))
    assert not pre
    stamp(A, 3)
    vm = Gq.vm
    A.e(f"v_mov_b32 {v(VPP1)}, {v(VL16)}")
    A.e(f"s_mov_b32 {s(S_SLA)}, 32768")
    A.e(f"s_mov_b32 {s(S_SLB)}, 65536")
    A.e(f"s_mov_b32 {s(S_SLC)}, 98304")
    A.e(vm.wait({('KV', 0)}) or "s_nop 0")
    A.e("s_barrier")
    A.es(k_reads(0))
    A.e(f"s_mov_b32 {s(S_TMP)}, {QSCALE!r}")
    A.e(f"v_mov_b32 {v(VT)}, {s(S_TMP)}")
    A.e(f"v_mov_b32 {v(VT+1)}, {s(S_TMP)}")
    for t in range(4):
        for qb in range(4):
            for n in range(2):
                r = 64 + 16*(2*t+n) + 4*qb
                A.e(f"v_pk_mul_f32 {v(r,2)}, {v(r,2)}, {v(VT,2)}")
                A.e(f"v_pk_mul_f32 {v(r+2,2)}, {v(r+2,2)}, {v(VT,2)}")
                A.e(f"v_cvt_pk_bf16_f32 {v(VQ(qb,t)+2*n)}, {v(r)}, {v(r+1)}")
                A.e(f"v_cvt_pk_bf16_f32 {v(VQ(qb,t)+2*n+1)}, {v(r+2)}, {v(r+3)}")
    A.e("s_waitcnt lgkmcnt(0)")
    A.es(qk_mfmas(0, [0,1,2,3], first=True))
    A.es(k_reads(1))
    for qb in range(4): A.e(f"v_mov_b32 {v(VL(1, qb))}, 0")
    for qb in MS:
        for i in range(4): A.e(f"v_mov_b32 {v(VL4(1, qb)+i)}, 0")
    A.e(f"v_mov_b32 {v(VT)}, 0x3f803f80")
    for i in range(4): A.e(f"v_accvgpr_write_b32 {a(AONE+i)}, {v(VT)}")
    A.e("s_nop 3")
    A.e(f"s_cmp_ge_u32 {s(S_U)}, {s(S_UM)}")
    A.e("s_cbranch_scc0 att_nomask0")
    A.e(f"v_mov_b32 {v(VT+13)}, {NEG_INF}")
    T.mask_diag(0, 0)
    A.label("att_nomask0")
    for qb in range(4):
        T.rowmax(0, qb, VT+qb, None)
    for qb in range(4):
        reduce_g(A, VT+qb, VT+4, "v_max_f32")
    for qb in range(4):
        for i in range(4): A.e(f"v_sub_f32 {v(VNM(qb)+i)}, 0, {v(VT+qb)}")
        for kb in range(2):
            for i in range(4):
                r = VS(0, kb, qb) + i
                A.e(f"v_sub_f32 {v(r)}, {v(r)}, {v(VT+qb)}")
    stamp(A, 4)
    A.es(early_exps(0))
    A.es([x[0] for x in rotate_items()])
    A.e(vm.wait({('KV', 1)}) or "s_nop 0")
    A.e("s_waitcnt lgkmcnt(0)")
    A.e("s_barrier")
    allq = [0, 1, 2, 3]
    T.body(0, allq, True, True, False, True, "i0", None, early=False)
    A.e(f"s_add_u32 {s(S_U)}, {s(S_U)}, 1")
    A.e(f"s_cmp_ge_u32 {s(S_U)}, {s(S_UM)}")
    A.e("s_cbranch_scc1 mask_i0")
    A.label("maskret_i0")
    T.ool.append(lambda: T.mask_block(1, "i0"))
    A.es(early_exps(1))
    A.e("s_branch att_m1")
    A.label("att_m0")
    T.body(0, allq, True, True, True, True, "m0", 'B', bar=True)
    A.label("att_m1")
    T.body(1, allq, True, True, True, True, "m1", 'B')
    A.e(f"s_cmp_lt_u32 {s(S_U)}, {s(S_UEND)}")
    A.e("s_cbranch_scc1 att_m0")
    A.e("s_waitcnt vmcnt(0)")
    A.e("s_barrier")
    stamp(A, 5)
    A.e(f"s_mov_b32 {s(S_CB)}, {s(S_WAVE)}")
    A.e(f"s_lshl_b32 {s(S_CS)}, {s(S_WAVE)}, 1")
    A.e(f"s_sub_i32 {s(S_CS)}, 5, {s(S_CS)}")
    for par in range(2):
        o = par ^ 1
        A.label(f"att_d{par}")
        A.e(f"s_cmp_eq_u32 {s(S_CB)}, 0")
        A.e(f"s_cbranch_scc1 att_nb{par}")
        A.e(f"s_sub_u32 {s(S_CB)}, {s(S_CB)}, 1")
        T.body(par, allq, True, True, True, False, f"b{par}", 'B')
        A.e(f"s_branch att_d{o}")
        A.label(f"att_nb{par}")
        A.e(f"s_cmp_lt_i32 {s(S_CS)}, 0")
        A.e(f"s_cbranch_scc1 att_t2_{par}")
        A.e(f"s_cmp_eq_u32 {s(S_CS)}, 0")
        A.e(f"s_cbranch_scc1 att_t1_{par}")
        A.e(f"s_sub_u32 {s(S_CS)}, {s(S_CS)}, 1")
        T.body(par, [2, 3], True, True, True, False, f"s{par}", 'S')
        A.e(f"s_branch att_nb{o}")
        A.label(f"att_t1_{par}")
        T.body(par, [2, 3], False, True, True, False, f"t{par}", None)
        A.e(f"s_branch att_t2_{o}")
    for par in range(2):
        A.label(f"att_t2_{par}")
        T.body(par, [2, 3], False, False, True, False, f"e{par}", None)
        if par == 0:
            A.e(f"v_mov_b32 {v(LR(0,2))}, {v(LR(1,2))}")
            A.e(f"v_mov_b32 {v(LR(0,3))}, {v(LR(1,3))}")
            A.e("s_branch att_epi")
    A.label("att_epi")
    stamp(A, 6)
    for qb in range(4):
        if qb not in MS: reduce_g(A, VL(0, qb), VT)
        A.e(f"v_rcp_f32 {v(VL(0, qb))}, {v(LR(0, qb))}")
    A.e("s_nop 7")
    A.e(f"s_lshl_b32 {s(S_TMP)}, {s(S_H)}, 19")
    n = 0
    for t in range(4):
        for qb in range(4):
            d = 64 + 4*(n % 4); e = 96 + 8*(n % 2); n += 1
            for k in range(2):
                for i in range(4): A.e(f"v_accvgpr_read_b32 {v(e+4*k+i)}, {a(AO(2*t+k, qb)+i)}")
            for i in range(8): A.e(f"v_mul_f32 {v(e+i)}, {v(e+i)}, {v(VL(0, qb))}")
            for i in range(4): A.e(f"v_cvt_pk_bf16_f32 {v(d+i)}, {v(e+2*i)}, {v(e+2*i+1)}")
            off = " offset:1024" if qb & 1 else ""
            A.e(f"buffer_store_dwordx4 {v(d,4)}, {v(VX0 + qb//2)}, {s(SRD_Y,4)}, {s(S_TMP)} offen{off}")
        A.e(f"s_add_u32 {s(S_TMP)}, {s(S_TMP)}, 131072")
    stamp_flush(A, 7, wsp, slot)
    A.e("s_endpgm")
    for f in T.ool: f()

def k_attn(A):
    name = "attn_kernel"
    A.kernel_begin(name)
    A.e("s_cmp_ge_u32 s2, 256")
    A.e("s_cbranch_scc0 attn_go")
    A.e("s_endpgm")
    A.label("attn_go")
    stamp(A, 0)
    A.e(f"s_load_dwordx2 s[4:5], s[0:1], {P_WQ}")
    A.e(f"s_load_dwordx2 s[8:9], s[0:1], {P_WS}")
    lane_wave(A, 1, S_WAVE, 2)
    A.e("s_and_b32 s3, s2, 7")
    A.e("s_lshl_b32 s3, s3, 2")
    A.e(f"s_bfe_u32 {s(S_H)}, s2, 0x20003")
    A.e(f"s_add_u32 {s(S_H)}, {s(S_H)}, s3")
    A.e("s_lshr_b32 s3, s2, 5")
    A.e(f"s_sub_u32 {s(S_J)}, 7, s3")
    A.e("s_waitcnt lgkmcnt(0)")
    attn_task(A, 8, 4, 2)
    return (name, 256, 163840, descriptor(name, 512, 102, 256))
```

```python
from asmlib import *
from gemmlib import *
import gen
from gen import *

GROT = 6
GC1 = -2.0*0.7978845608028654*1.4426950408889634
GC2 = GC1*0.044715
def gelu_items(x, t, sc1, sc2):
    return [(f"v_mul_f32 {v(t)}, {v(x)}, {v(x)}", 1),
            (f"v_fma_f32 {v(t)}, {v(t)}, {s(sc2)}, {v(sc1)}", 1),
            (f"v_mul_f32 {v(t)}, {v(t)}, {v(x)}", 1),
            (f"v_exp_f32 {v(t)}, {v(t)}", 2),
            (f"v_add_f32 {v(t)}, 1.0, {v(t)}", 1),
            (f"v_rcp_f32 {v(t)}, {v(t)}", 2),
            (f"v_mul_f32 {v(x)}, {v(x)}, {v(t)}", 1)]
def gelu_block(A, xs, ts, sc1, sc2):
    n = len(ts)
    assert n >= 2
    for i in range(0, len(xs), n):
        grp = [gelu_items(x, t, sc1, sc2) for x, t in zip(xs[i:i+n], ts)]
        for k in range(7):
            for g in grp: A.e(g[k][0])

def k_z2(A):
    name = "z2_kernel"
    A.kernel_begin(name)
    A.e("s_cmp_ge_u32 s2, 192")
    A.e("s_cbranch_scc1 z2_end")
    stamp(A, 0)
    A.e(f"s_load_dwordx2 s[4:5], s[0:1], {P_WIN}")
    A.e(f"s_load_dwordx2 s[8:9], s[0:1], {P_WS}")
    lane_wave(A, 1, 30, 2)
    A.e("s_bfe_u32 s40, s2, 0x20001")
    A.e("s_lshl_b32 s40, s40, 2")
    A.e("s_bfe_u32 s33, s2, 0x20003")
    A.e("s_add_u32 s40, s40, s33")
    A.e("s_and_b32 s41, s2, 1")
    A.e("s_mul_i32 s41, s41, 6")
    A.e("s_lshr_b32 s33, s2, 5")
    A.e("s_add_u32 s41, s41, s33")
    A.e("s_waitcnt lgkmcnt(0)")
    A.srd(16, 4, 576*4608*2)
    srd_ws(A, 12, 8, WS_XN, SZ_XN)
    srd_ws(A, 20, 8, WS_Z2, SZ_Z2)
    srd_ws(A, 24, 8, WS_ST, SZ_ST)
    opX = OpFrag("X", 8, 128, 4, 6, 73728, 12, 28, 2, 3, rowperm=True)
    opW = OpTr("W", 384, 9216, 'nat', 6, 5, 0, 16, 29, 4, 8)
    A.e("s_lshl_b32 s28, s40, 13")
    A.e("s_mul_i32 s29, s41, 384")
    A.e("s_add_u32 s29, s29, 4608")
    A.e("s_lshl_b32 s34, s30, 11")
    A.e("s_mul_i32 s35, s30, 3072")
    A.e("s_lshr_b32 s31, s30, 1")
    A.e("s_and_b32 s32, s30, 1")
    A.e("s_lshl_b32 s36, s31, 2")
    A.e("s_mul_i32 s37, s32, 6")
    if gen.ROT:
        A.e("s_add_u32 s46, s40, s41")
        A.e("s_mul_i32 s47, s46, 43")
        A.e("s_lshr_b32 s47, s47, 8")
        A.e("s_mul_i32 s47, s47, 6")
        A.e("s_sub_u32 s46, s46, s47")
        rot_setup(A, opX, 6, 48, 46, 33)
        rot_setup(A, opW, 6, 90, 46, 33)
    opX.setup(A, 1, 30, 36, 20, 33)
    opW.setup(A, 1, 30, 37, 20, 33)
    acc = lambda i, j: v(64 + 24*i + 4*j, 4)
    G = Gemm(18, opX, opW, acc, 0, 32, 34, 35, rate=5, P=1)
    stamp(A, 1)
    A.es(G.prologue_issue(15))
    A.es(G.prologue_wait())
    stamp(A, 2)
    emit_steps(A, [G.step(h) for h in range(18)], 38, "z2l")
    stamp(A, 3)
    A.e(f"s_mov_b32 s42, {GC2!r}")
    A.e(f"v_mov_b32 v2, {GC1!r}")
    A.e("s_nop 7")
    gelu_block(A, list(range(64, 160)), list(range(4, 12)), 2, 42)
    A.e("v_lshlrev_b32 v3, 4, v1")
    A.e("s_lshl_b32 s43, s40, 2")
    A.e("s_lshl_b32 s33, s31, 1")
    A.e("s_add_u32 s43, s43, s33")
    A.e(f"s_mul_i32 s43, s43, {144*1024}")
    A.e("s_mul_i32 s33, s41, 12")
    A.e("s_add_u32 s33, s33, s37")
    A.e("s_lshl_b32 s33, s33, 10")
    A.e("s_add_u32 s43, s43, s33")
    n = 0
    for q in range(2):
        for j in range(6):
            d = 4 + 4*(n % 4); n += 1
            pack_pair(A, ('v', 64+24*(2*q)+4*j), ('v', 64+24*(2*q+1)+4*j), d, None)
            if j in (0, 4): A.e(f"s_add_u32 s33, s43, {q*144*1024 + j*1024}")
            A.e(f"buffer_store_dwordx4 {v(d,4)}, v3, s[20:23], s33 offen offset:{(j%4)*1024}")
    for i in range(4):
        for r in range(4):
            a0 = 64 + 24*i + r
            A.e(f"v_add_f32 {v(24+4*i+r)}, {v(a0)}, {v(a0+4)}")
            A.e(f"v_mul_f32 {v(40+4*i+r)}, {v(a0)}, {v(a0)}")
            for j in range(1, 6):
                if j > 1: A.e(f"v_add_f32 {v(24+4*i+r)}, {v(24+4*i+r)}, {v(a0+4*j)}")
                A.e(f"v_fmac_f32 {v(40+4*i+r)}, {v(a0+4*j)}, {v(a0+4*j)}")
    A.e("s_nop 1")
    for sh in (8, 4, 2, 1):
        for r in range(24, 56):
            A.e(f"v_add_f32_dpp {v(r)}, {v(r)}, {v(r)} row_ror:{sh} row_mask:0xf bank_mask:0xf")
    A.e("v_lshrrev_b32 v3, 4, v1")
    A.e(f"v_mul_u32_u24 v3, {8*192}, v3")
    A.e("s_lshl_b32 s43, s40, 7")
    A.e("s_lshl_b32 s33, s31, 6")
    A.e("s_add_u32 s43, s43, s33")
    A.e("s_mul_i32 s43, s43, 192")
    A.e("s_lshl_b32 s33, s41, 1")
    A.e("s_add_u32 s33, s33, s32")
    A.e("s_lshl_b32 s33, s33, 3")
    A.e("s_add_u32 s43, s43, s33")
    A.e("v_and_b32 v2, 15, v1")
    A.e("v_cmp_eq_u32 vcc, 0, v2")
    A.e("s_and_saveexec_b64 s[44:45], vcc")
    for i in range(4):
        if i == 2: A.e(f"s_add_u32 s43, s43, {32*192}")
        for r in range(4):
            d = 4 + 2*((4*i+r) % 4)
            A.e(f"v_mov_b32 {v(d)}, {v(24+4*i+r)}")
            A.e(f"v_mov_b32 {v(d+1)}, {v(40+4*i+r)}")
            A.e(f"buffer_store_dwordx2 {v(d,2)}, v3, s[24:27], s43 offen offset:{(4*(i%2)+r)*192}")
    A.e("s_mov_b64 exec, s[44:45]")
    stamp(A, 4)
    stamp_flush(A, 5, 8, 3)
    A.label("z2_end")
    A.e("s_endpgm")
    return (name, 192, 73728+6*8192, descriptor(name, 336, 102, 256))

def k_norm(A):
    name = "norm_kernel"
    A.kernel_begin(name)
    A.e("s_cmp_ge_u32 s2, 256")
    A.e("s_cbranch_scc1 norm_end")
    A.e(f"s_load_dwordx2 s[8:9], s[0:1], {P_WS}")
    lane_wave(A, 1, 30, 2)
    A.e("s_lshr_b32 s40, s2, 2")
    A.e("s_and_b32 s41, s2, 3")
    A.e("s_waitcnt lgkmcnt(0)")
    srd_ws(A, 20, 8, WS_Z2, SZ_Z2)
    srd_ws(A, 24, 8, WS_ST, SZ_ST)
    A.e("v_lshlrev_b32 v3, 4, v1")
    A.e(f"s_mul_i32 s43, s40, 144")
    A.e("s_mul_i32 s33, s41, 36")
    A.e("s_add_u32 s43, s43, s33")
    A.e("s_mul_i32 s33, s30, 9")
    A.e("s_add_u32 s43, s43, s33")
    A.e("s_lshl_b32 s43, s43, 10")
    for k in range(9):
        if k % 4 == 0 and k: A.e("s_add_u32 s43, s43, 4096")
        A.e(f"buffer_load_dwordx4 {v(64+4*k,4)}, v3, s[20:23], s43 offen offset:{(k%4)*1024}")
    A.e("s_sub_u32 s43, s43, 8192")
    A.e("v_and_b32 v4, 31, v1")
    A.e("v_mul_u32_u24 v4, 192, v4")
    A.e("v_lshrrev_b32 v5, 5, v1")
    A.e("v_mul_u32_u24 v5, 96, v5")
    A.e("v_add_u32 v4, v4, v5")
    A.e(f"s_mul_i32 s33, s40, {32*192}")
    for k in range(6):
        A.e(f"buffer_load_dwordx4 {v(8+4*k,4)}, v4, s[24:27], s33 offen offset:{16*k}")
    A.e("s_waitcnt vmcnt(0)")
    for k in range(1, 12):
        A.e(f"v_add_f32 v8, v8, {v(8+2*k)}")
        A.e(f"v_add_f32 v9, v9, {v(9+2*k)}")
    for r in (8, 9):
        A.e(f"v_mov_b32 v10, {v(r)}")
        A.e("s_nop 1")
        A.e(f"v_permlane32_swap_b32 v10, {v(r)}")
        A.e("s_nop 1")
        A.e(f"v_add_f32 {v(r)}, {v(r)}, v10")
    ln_coeffs(A, 8, 9, 2304, 10, 11, 12)
    A.e("v_and_b32 v4, 31, v1")
    A.e("v_lshlrev_b32 v4, 3, v4")
    A.e("s_lshl_b32 s33, s30, 8")
    A.e("v_add_u32 v4, s33, v4")
    A.e("ds_write_b64 v4, v[10:11]")
    A.e("v_lshrrev_b32 v4, 4, v1")
    A.e("v_lshlrev_b32 v4, 6, v4")
    A.e("v_add_u32 v4, s33, v4")
    A.e("s_waitcnt lgkmcnt(0)")
    for k in range(4):
        A.e(f"ds_read_b128 {v(16+4*k,4)}, v4 offset:{16*k}")
    A.e("s_waitcnt lgkmcnt(0)")
    for k in range(9):
        for r in range(4):
            x = 64 + 4*k + r
            A.e(f"v_lshlrev_b32 v8, 16, {v(x)}")
            A.e(f"v_and_b32 v9, 0xffff0000, {v(x)}")
            A.e(f"v_fma_f32 v8, v8, {v(16+4*r)}, {v(17+4*r)}")
            A.e(f"v_fma_f32 v9, v9, {v(18+4*r)}, {v(19+4*r)}")
            A.e(f"v_cvt_pk_bf16_f32 {v(x)}, v8, v9")
        if k % 4 == 0 and k: A.e("s_add_u32 s43, s43, 4096")
        A.e(f"buffer_store_dwordx4 {v(64+4*k,4)}, v3, s[20:23], s43 offen offset:{(k%4)*1024}")
    A.label("norm_end")
    A.e("s_endpgm")
    return (name, 256, 1024, descriptor(name, 104, 64, 104))

def g_task(A, S_WAVE, S_TT, S_FT, wsp, slot):
    A.e(f"s_load_dwordx2 s[4:5], s[0:1], {P_WIN}")
    A.e(f"s_load_dwordx4 s[40:43], s[0:1], {P_WSP}")
    SZ, SW, SX, SI, SY, SB = 12, 16, 20, 24, 44, 48
    srd_ws(A, SZ, wsp, WS_Z2, SZ_Z2)
    srd_ws(A, SX, wsp, WS_XN, SZ_XN)
    srd_ws(A, SY, wsp, WS_Y, SZ_Y)
    A.e("s_waitcnt lgkmcnt(0)")
    A.srd(SW, 40, 2048*2048*2)
    A.srd(SI, 4, 576*4608*2)
    A.srd(SB, 42, 2048*2)
    T = 33
    S_ZO, S_WO, S_M0Z, S_M0W, S_BF, S_BT, S_LOOP = 28, 34, 36, 37, 38, 39, 29
    opZ = OpFrag("Z", 12, 144, 6, 4, 98304, SZ, S_ZO, 2, 3)
    opS = OpRm("S", 4096, 8, 3, 0, SW, S_WO, 4, 8)
    A.e(f"s_mul_i32 {s(S_ZO)}, {s(S_FT)}, {12*1024}")
    A.e(f"s_lshl_b32 {s(S_WO)}, {s(S_TT)}, 20")
    A.e(f"s_add_u32 {s(S_WO+1)}, {s(S_WO)}, {32*4096}")
    A.e(f"s_mul_i32 {s(S_M0Z)}, {s(S_WAVE)}, 3072")
    A.e(f"s_lshl_b32 {s(S_M0W)}, {s(S_WAVE)}, 13")
    A.e(f"s_and_b32 {s(S_BF)}, {s(S_WAVE)}, 1")
    A.e(f"s_mul_i32 {s(S_BF)}, {s(S_BF)}, 6")
    A.e(f"s_lshr_b32 {s(S_BT)}, {s(S_WAVE)}, 1")
    A.e(f"s_lshl_b32 {s(S_BT)}, {s(S_BT)}, 3")
    if gen.ROT:
        A.e(f"s_add_u32 s55, {s(S_TT)}, {s(S_FT)}")
        A.e("s_mul_i32 s56, s55, 86")
        A.e("s_lshr_b32 s56, s56, 8")
        A.e("s_mul_i32 s56, s56, 3")
        A.e("s_sub_u32 s55, s55, s56")
        A.e("s_lshl_b32 s55, s55, 1")
        rot_setup(A, opZ, GROT, 90, 55, T, 64)
        rot_setup(A, opS, GROT, 97, 55, T, 64)
    opZ.setup(A, 1, S_WAVE, S_BF, 20, T)
    opS.setup(A, 1, S_WAVE, S_BT, 20, T)
    acc = lambda i, j: v(64 + 32*i + 4*j, 4)
    G = Gemm(64, opZ, opS, acc, 0, 48, S_M0Z, S_M0W, rate=lambda h: 7 if h > 4 else 11, P=1)
    stamp(A, 1)
    A.es(G.prologue_issue(14))
    A.e("v_and_b32 v20, 15, v1")
    A.e("v_lshlrev_b32 v20, 1, v20")
    A.e(f"s_lshl_b32 {s(T)}, {s(S_TT)}, 4")
    A.e(f"s_add_u32 {s(T)}, {s(T)}, {s(S_BT)}")
    A.e(f"s_lshl_b32 {s(T)}, {s(T)}, 5")
    for j in range(8):
        A.e(f"buffer_load_ushort {v(12+j)}, v20, {s(SB,4)}, {s(T)} offen offset:{32*j}")
        G.vm.issue(('B', j))
    A.es(G.prologue_wait())
    stamp(A, 2)
    opW = OpTr("W", 384, 9216, 'nat', 6, 5, 0, SI, S_ZO, 24, 28)
    opX = OpFrag("X", 16, 128, 8, 4, 61440, SX, S_WO, 34, 35)
    G2 = Gemm(18, opW, opX, acc, 0, 48, S_M0Z, 52, rate=7, P=1, vm=G.vm)
    steps = [G.step(h) for h in range(64)]
    emit_steps(A, steps, S_LOOP, "gl")
    stamp(A, 3)
    A.e(f"s_mul_i32 {s(S_ZO)}, {s(S_FT)}, 384")
    A.e(f"s_lshl_b32 {s(S_WO)}, {s(S_TT)}, 14")
    A.e(f"s_lshl_b32 s52, {s(S_WAVE)}, 12")
    if gen.ROT:
        rot_setup(A, opW, 6, 90, 55, T)
        rot_setup(A, opX, 6, 96, 55, T)
    opW.setup(A, 1, S_WAVE, S_BF, 20, T)
    opX.setup(A, 1, S_WAVE, S_BT, 20, T)
    A.e("s_barrier")
    A.es(G2.prologue_issue(21))
    for j in range(8): A.e(f"v_lshlrev_b32 {v(12+j)}, 16, {v(12+j)}")
    for i in range(6):
        for j in range(8):
            r = 64 + 32*i + 4*j
            for q in range(4): A.e(f"v_add_f32 {v(r+q)}, {v(r+q)}, {v(12+j)}")
            A.e(f"v_cvt_pk_bf16_f32 {v(r)}, {v(r)}, {v(r+1)}")
            A.e(f"v_cvt_pk_bf16_f32 {v(r+2)}, {v(r+2)}, {v(r+3)}")
            A.e(f"v_accvgpr_write_b32 {a(112+16*i+2*j)}, {v(r)}")
            A.e(f"v_accvgpr_write_b32 {a(113+16*i+2*j)}, {v(r+2)}")
    A.es(G2.prologue_wait())
    stamp(A, 4)
    emit_steps(A, [G2.step(h) for h in range(18)], S_LOOP, "z1l")
    stamp(A, 5)
    A.e(f"s_mov_b32 s53, {GC2!r}")
    A.e(f"v_mov_b32 v2, {GC1!r}")
    A.e("v_lshlrev_b32 v3, 4, v1")
    A.e(f"s_mul_i32 s54, {s(S_FT)}, 6")
    A.e(f"s_lshr_b32 {s(T)}, {s(S_BF)}, 1")
    A.e(f"s_add_u32 s54, s54, {s(T)}")
    A.e("s_add_u32 s54, s54, 128")
    A.e("s_lshl_b32 s54, s54, 7")
    A.e(f"s_lshl_b32 {s(T)}, {s(S_TT)}, 4")
    A.e(f"s_add_u32 s54, s54, {s(T)}")
    A.e(f"s_add_u32 s54, s54, {s(S_BT)}")
    A.e("s_lshl_b32 s54, s54, 10")
    n = 0
    for p in range(3):
        for j in range(8):
            xs = [64 + 32*(2*p) + 4*j + q for q in range(4)] + [64 + 32*(2*p+1) + 4*j + q for q in range(4)]
            gelu_block(A, xs, list(range(4, 12)), 2, 53)
            d = 40 + 4*(n % 4); n += 1
            for k in range(2):
                for h in range(2):
                    A.e(f"v_accvgpr_read_b32 v20, {a(112+16*(2*p+k)+2*j+h)}")
                    x0 = xs[4*k+2*h]
                    A.e("v_lshlrev_b32 v21, 16, v20")
                    A.e("v_and_b32 v20, 0xffff0000, v20")
                    A.e(f"v_mul_f32 {v(x0)}, {v(x0)}, v21")
                    A.e(f"v_mul_f32 {v(x0+1)}, {v(x0+1)}, v20")
                    A.e(f"v_cvt_pk_bf16_f32 {v(d+2*k+h)}, {v(x0)}, {v(x0+1)}")
            if j % 4 == 0: A.e(f"s_add_u32 {s(T)}, s54, {p*131072 + j*1024}")
            A.e(f"buffer_store_dwordx4 {v(d,4)}, v3, {s(SY,4)}, {s(T)} offen offset:{(j%4)*1024}")
    stamp(A, 6)
    stamp_flush(A, 7, wsp, slot)
    A.e("s_endpgm")

def k_g(A):
    name = "g_kernel"
    A.kernel_begin(name)
    A.e("s_cmp_ge_u32 s2, 96")
    A.e("s_cbranch_scc0 g_go")
    A.e("s_endpgm")
    A.label("g_go")
    stamp(A, 0)
    A.e(f"s_load_dwordx2 s[8:9], s[0:1], {P_WS}")
    lane_wave(A, 1, 30, 2)
    A.e("s_and_b32 s31, s2, 1")
    A.e("s_lshl_b32 s31, s31, 2")
    A.e("s_bfe_u32 s33, s2, 0x20003")
    A.e("s_add_u32 s31, s31, s33")
    A.e("s_bfe_u32 s32, s2, 0x20001")
    A.e("s_mul_i32 s32, s32, 3")
    A.e("s_lshr_b32 s33, s2, 5")
    A.e("s_add_u32 s32, s32, s33")
    A.e("s_waitcnt lgkmcnt(0)")
    g_task(A, 30, 31, 32, 8, 4)
    return (name, 96, 147456, descriptor(name, 464, 102, 256))

NSPLIT = 5
def k_fin(A):
    name = "fin_kernel"
    A.kernel_begin(name)
    A.e("s_cmp_ge_u32 s2, 240")
    A.e("s_cbranch_scc1 fin_end")
    stamp(A, 0)
    A.e(f"s_load_dwordx2 s[4:5], s[0:1], {P_WO}")
    A.e(f"s_load_dwordx2 s[6:7], s[0:1], {P_WOUT}")
    A.e(f"s_load_dwordx2 s[8:9], s[0:1], {P_WS}")
    lane_wave(A, 1, 30, 2)
    A.e("s_and_b32 s40, s2, 7")
    A.e("s_mul_i32 s40, s40, 30")
    A.e("s_lshr_b32 s33, s2, 3")
    A.e("s_add_u32 s33, s40, s33")
    A.e("s_mul_i32 s40, s33, 21846")
    A.e("s_lshr_b32 s40, s40, 16")
    A.e("s_mul_i32 s41, s40, 3")
    A.e("s_sub_u32 s41, s33, s41")
    A.e("s_lshr_b32 s42, s40, 4")
    A.e("s_and_b32 s40, s40, 15")
    A.e("s_waitcnt lgkmcnt(0)")
    A.e(f"s_sub_u32 s6, s6, {4096*1152}")
    A.e("s_subb_u32 s7, s7, 0")
    A.e(f"s_mov_b32 s48, {4096*1152}")
    A.e(f"s_mov_b32 s49, {6400*1152}")
    A.e("s_cmp_lt_u32 s42, 4")
    A.e("s_cselect_b32 s16, s4, s6")
    A.e("s_cselect_b32 s17, s5, s7")
    A.e(f"s_cselect_b32 s18, s48, s49")
    A.e("s_and_b32 s17, s17, 0xffff")
    A.e("s_mov_b32 s19, 0x00020000")
    A.e("s_cmp_lt_u32 s42, 3")
    A.e("s_cselect_b32 s44, s4, s6")
    A.e("s_cselect_b32 s45, s5, s7")
    A.e(f"s_cselect_b32 s46, s48, s49")
    A.e("s_and_b32 s45, s45, 0xffff")
    A.e("s_mov_b32 s47, 0x00020000")
    srd_ws(A, 12, 8, WS_Y, SZ_Y)
    srd_ws(A, 20, 8, WS_PT, SZ_PT)
    opW = OpTr("W", 384, 1152, 'perm', 6, 4, 0, lambda u: 16 if u < 8 else 44, 29, 4, 8)
    opY = OpFrag("Y", 8, 128, 4, 8, 61440, 12, 28, 2, 3)
    A.e(f"s_mul_i32 s28, s42, {40*128}")
    A.e("s_lshl_b32 s33, s40, 3")
    A.e("s_add_u32 s28, s28, s33")
    A.e("s_lshl_b32 s28, s28, 10")
    A.e(f"s_mul_i32 s29, s42, {1280*1152}")
    A.e("s_mul_i32 s33, s41, 384")
    A.e("s_add_u32 s29, s29, s33")
    A.e("s_lshl_b32 s34, s30, 11")
    A.e("s_mul_i32 s35, s30, 3072")
    A.e("s_lshr_b32 s31, s30, 1")
    A.e("s_and_b32 s32, s30, 1")
    A.e("s_lshl_b32 s36, s31, 2")
    A.e("s_mul_i32 s37, s32, 6")
    if gen.ROT:
        A.e("s_add_u32 s50, s40, s41")
        A.e("s_and_b32 s50, s50, 3")
        rot_setup(A, opW, 4, 52, 50, 33)
        rot_setup(A, opY, 4, 90, 50, 33)
    opY.setup(A, 1, 30, 36, 20, 33)
    opW.setup(A, 1, 30, 37, 20, 33)
    acc = lambda i, j: v(64 + 16*i + 4*j, 4)
    G = Gemm(40, opW, opY, acc, 0, 48, 35, 34, rate=5, P=1)
    stamp(A, 1)
    A.es(G.prologue_issue(15))
    A.es(G.prologue_wait())
    stamp(A, 2)
    emit_steps(A, [G.step(h) for h in range(40)], 38, "finl", max_period=10)
    stamp(A, 3)
    A.e("v_lshlrev_b32 v3, 4, v1")
    A.e("s_mul_i32 s43, s42, 48")
    A.e("s_mul_i32 s33, s40, 3")
    A.e("s_add_u32 s43, s43, s33")
    A.e("s_add_u32 s43, s43, s41")
    A.e("s_lshl_b32 s43, s43, 2")
    A.e("s_add_u32 s43, s43, s30")
    A.e(f"s_mul_i32 s43, s43, {24*1024}")
    A.e("s_nop 4")
    for b in range(24):
        if b % 4 == 0 and b: A.e("s_add_u32 s43, s43, 4096")
        A.e(f"buffer_store_dwordx4 {v(64+4*b,4)}, v3, s[20:23], s43 offen offset:{(b%4)*1024}")
    stamp(A, 4)
    stamp_flush(A, 5, 8, 5)
    A.label("fin_end")
    A.e("s_endpgm")
    return (name, 240, 61440+8*8192, descriptor(name, 336, 102, 256))

def k_red(A):
    name = "red_kernel"
    A.kernel_begin(name)
    A.e("s_cmp_ge_u32 s2, 144")
    A.e("s_cbranch_scc1 red_end")
    A.e(f"s_load_dwordx2 s[4:5], s[0:1], {P_X}")
    A.e(f"s_load_dwordx2 s[6:7], s[0:1], {P_OUT}")
    A.e(f"s_load_dwordx2 s[8:9], s[0:1], {P_WS}")
    lane_wave(A, 1, 30, 2)
    A.e("s_mul_i32 s40, s2, 21846")
    A.e("s_lshr_b32 s40, s40, 16")
    A.e("s_mul_i32 s33, s40, 3")
    A.e("s_sub_u32 s41, s2, s33")
    A.e("s_waitcnt lgkmcnt(0)")
    A.srd(12, 4, 2048*576*2)
    A.srd(16, 6, 2048*576*2)
    srd_ws(A, 20, 8, WS_PT, SZ_PT)
    A.e("v_lshlrev_b32 v3, 4, v1")
    A.e("s_lshl_b32 s43, s40, 2")
    A.e("s_add_u32 s43, s43, s30")
    A.e("s_mul_i32 s43, s43, 24")
    A.e("s_lshl_b32 s33, s41, 3")
    A.e("s_add_u32 s43, s43, s33")
    A.e("s_lshl_b32 s43, s43, 10")
    for sp in range(NSPLIT):
        for b in range(8):
            if b == 4: A.e("s_add_u32 s43, s43, 4096")
            A.e(f"buffer_load_dwordx4 {v(32+32*sp+4*b,4)}, v3, s[20:23], s43 offen offset:{(b%4)*1024}")
        A.e(f"s_add_u32 s43, s43, {48*4*24*1024 - 4096}")
    A.e("s_mul_i32 s44, s40, 21846")
    A.e("s_lshr_b32 s44, s44, 16")
    A.e("s_mul_i32 s33, s44, 3")
    A.e("s_sub_u32 s45, s40, s33")
    A.e("s_lshl_b32 s44, s44, 1")
    A.e("s_lshr_b32 s33, s30, 1")
    A.e("s_add_u32 s44, s44, s33")
    A.e(f"s_mul_i32 s44, s44, {64*1152}")
    A.e("s_mul_i32 s45, s45, 384")
    A.e("s_add_u32 s44, s44, s45")
    A.e("s_and_b32 s33, s30, 1")
    A.e("s_mul_i32 s33, s33, 192")
    A.e("s_add_u32 s44, s44, s33")
    A.e("s_lshl_b32 s33, s41, 6")
    A.e("s_add_u32 s44, s44, s33")
    A.e("v_and_b32 v4, 15, v1")
    A.e("v_mul_u32_u24 v4, 1152, v4")
    A.e("v_lshrrev_b32 v5, 4, v1")
    A.e("v_lshl_add_u32 v4, v5, 3, v4")
    for j in range(4):
        A.e(f"s_add_u32 {s(48+j)}, s44, {16*1152*j}")
    for b in range(8):
        A.e(f"buffer_load_dwordx2 {v(8+2*b,2)}, v4, s[12:15], {s(48+b%4)} offen offset:{32*(b//4)}")
    A.e("s_waitcnt vmcnt(0)")
    for b in range(8):
        r = 32 + 4*b
        for sp in range(1, NSPLIT):
            for q in range(4): A.e(f"v_add_f32 {v(r+q)}, {v(r+q)}, {v(r+32*sp+q)}")
        for h in range(2):
            A.e(f"v_lshlrev_b32 v6, 16, {v(8+2*b+h)}")
            A.e(f"v_and_b32 v7, 0xffff0000, {v(8+2*b+h)}")
            A.e(f"v_add_f32 {v(r+2*h)}, {v(r+2*h)}, v6")
            A.e(f"v_add_f32 {v(r+2*h+1)}, {v(r+2*h+1)}, v7")
            A.e(f"v_cvt_pk_bf16_f32 {v(8+2*b+h)}, {v(r+2*h)}, {v(r+2*h+1)}")
        A.e(f"buffer_store_dwordx2 {v(8+2*b,2)}, v4, s[16:19], {s(48+b%4)} offen offset:{32*(b//4)}")
    A.label("red_end")
    A.e("s_endpgm")
    return (name, 144, 0, descriptor(name, 192, 64, 192))
```

```python
from asmlib import *

class VM:
    def __init__(self):
        self.ops = []
        self.done = -1
    def issue(self, tag):
        self.ops.append(tag)
    def wait(self, tags):
        last = -1
        for i, t in enumerate(self.ops):
            if t in tags: last = i
        if last <= self.done: return None
        n = len(self.ops) - 1 - last
        n = min(n, 63)
        self.done = len(self.ops) - 1 - n
        return f"s_waitcnt vmcnt({n})"
    def all_done(self):
        self.done = len(self.ops) - 1

class Gaps:
    def __init__(self, n, cap=2):
        self.n = n; self.cap = cap
        self.items = [[] for _ in range(n)]
        self.load = [0]*n
    def place_stream(self, items, lo, hi, wants=None):
        if not items: return
        m = len(items)
        prev = lo - 1
        prevsep = False
        for k, it in enumerate(items):
            text, cost = it[0], it[1]
            sep = len(it) > 2 and it[2] == 'sep'
            want = wants[k] if wants else lo + (k * (hi - lo)) // m
            p = max(want, prev + (1 if sep else 0), 0)
            q = p
            while q < self.n and self.load[q] + cost > self.cap: q += 1
            if q >= self.n or q > p + 3:
                cands = [x for x in range(p, min(self.n, p + 4))]
                if not cands:
                    assert not sep, "no room for separated item"
                    cands = [self.n - 1]
                q = min(cands, key=lambda x: self.load[x])
            self.items[q].append(text); self.load[q] += cost
            prev = q
    def emit(self, mf):
        out = []
        for i, m in enumerate(mf):
            out.append(m)
            out += self.items[i]
        return out

def rot_setup(A, op, F, sinc, sa, st, H=None):
    Fu = F // op.unit_ks
    nfull = None if (H is None or H % F == 0) else (H // F)*Fu
    op.rot = (Fu, sinc, nfull)
    adv = op.adv
    if op.unit_ks == 2: A.e(f"s_lshr_b32 {s(st)}, {s(sa)}, 1")
    else: A.e(f"s_mov_b32 {s(st)}, {s(sa)}")
    for tau in range(Fu - 1):
        A.e(f"s_mov_b32 {s(sinc+tau)}, {adv}")
        A.e(f"s_cmp_eq_u32 {s(st)}, {Fu-1-tau}")
        A.e(f"s_cselect_b32 {s(sinc+tau)}, {((1-Fu)*adv) & 0xffffffff}, {s(sinc+tau)}")
    A.e(f"s_mov_b32 {s(sinc+Fu-1)}, {adv}")
    A.e(f"s_cmp_lg_u32 {s(st)}, 0")
    A.e(f"s_cselect_b32 {s(sinc+Fu-1)}, {(Fu+1)*adv}, {s(sinc+Fu-1)}")
    A.e(f"s_mul_i32 {s(st)}, {s(st)}, {adv}")
    if nfull is not None:
        A.e(f"s_sub_u32 {s(sinc+Fu)}, {s(sinc+Fu-1)}, {s(st)}")
    for k in range(2 if isinstance(op, OpRm) else 1):
        A.e(f"s_add_u32 {s(op.soff+k)}, {s(op.soff+k)}, {s(st)}")
def adv_text(op, u, k=0):
    r = getattr(op, 'rot', None)
    inc = str(op.adv) if r is None else s(r[1] + u % r[0])
    if r is not None and r[2] is not None:
        if u == r[2] - 1: inc = s(r[1] + r[0])
        if u >= r[2]: inc = str(op.adv)
    return f"s_add_u32 {s(op.soff+k)}, {s(op.soff+k)}, {inc}"

def R(kind, i, n=1):
    return (v if kind == 'v' else a)(i, n)

class OpTr:
    unit_ks = 1
    def __init__(self, name, NB, GS, order, nblk, nslots, lds_base, srd, soff, vdma, vrd):
        self.name=name; self.NB=NB; self.GS=GS; self.order=order; self.nblk=nblk
        self.nslots=nslots; self.lds_base=lds_base; self.srd=srd; self.soff=soff
        self.vdma=vdma; self.vrd=vrd
        self.unit_bytes = 32*NB
        self.npw = NB//16//2//4
        self.adv = 32*GS
    def setup(self, A, vlane, swave, sblkoff, vt, st):
        CPR = self.NB//16
        t0,t1,t2,t3 = vt, vt+1, vt+2, vt+3
        for j in range(self.npw):
            A.e(f"s_mul_i32 {s(st)}, {s(swave)}, {64*self.npw}")
            A.e(f"v_add_u32 {v(t0)}, {s(st)}, {v(vlane)}")
            if j: A.e(f"v_add_u32 {v(t0)}, {64*j}, {v(t0)}")
            if CPR == 24:
                A.e(f"v_mul_u32_u24 {v(t1)}, 2731, {v(t0)}")
                A.e(f"v_lshrrev_b32 {v(t1)}, 16, {v(t1)}")
                A.e(f"v_mul_u32_u24 {v(t2)}, 24, {v(t1)}")
                A.e(f"v_sub_u32 {v(t2)}, {v(t0)}, {v(t2)}")
            else:
                lg = {32:5, 16:4}[CPR]
                A.e(f"v_lshrrev_b32 {v(t1)}, {lg}, {v(t0)}")
                A.e(f"v_and_b32 {v(t2)}, {CPR-1}, {v(t0)}")
            self._swz(A, t3, t1, t0)
            A.e(f"v_lshlrev_b32 {v(t3)}, 1, {v(t3)}")
            A.e(f"v_xor_b32 {v(t2)}, {v(t2)}, {v(t3)}")
            A.e(f"v_lshlrev_b32 {v(t2)}, 4, {v(t2)}")
            A.e(f"s_mov_b32 {s(st)}, {self.GS}")
            A.e(f"v_mul_lo_u32 {v(t1)}, {v(t1)}, {s(st)}")
            A.e(f"v_add_u32 {v(self.vdma+j)}, {v(t1)}, {v(t2)}")
            if j: A.e(f"v_subrev_u32 {v(self.vdma+j)}, {1024*j}, {v(self.vdma+j)}")
        A.e(f"v_lshrrev_b32 {v(t0)}, 4, {v(vlane)}")
        A.e(f"v_bfe_u32 {v(t1)}, {v(vlane)}, 2, 2")
        A.e(f"v_lshlrev_b32 {v(t0)}, {3 if self.order=='nat' else 2}, {v(t0)}")
        A.e(f"v_add_u32 {v(t1)}, {v(t1)}, {v(t0)}")
        self._swz(A, t3, t1, t0)
        A.e(f"v_mul_u32_u24 {v(t1)}, {self.NB}, {v(t1)}")
        A.e(f"v_and_b32 {v(t2)}, 3, {v(vlane)}")
        A.e(f"v_lshl_add_u32 {v(t1)}, {v(t2)}, 3, {v(t1)}")
        A.e(f"v_add_u32 {v(t1)}, {self.lds_base}, {v(t1)}")
        for j in range(self.nblk):
            A.e(f"s_add_u32 {s(st)}, {s(sblkoff)}, {j}")
            A.e(f"v_xor_b32 {v(t2)}, {s(st)}, {v(t3)}")
            A.e(f"v_lshl_add_u32 {v(self.vrd+j)}, {v(t2)}, 5, {v(t1)}")
    def _swz(self, A, d, row, tmp):
        if self.NB == 384:
            if self.order == 'nat':
                A.e(f"v_bfe_u32 {v(d)}, {v(row)}, 1, 1")
                A.e(f"v_bfe_u32 {v(tmp)}, {v(row)}, 3, 1")
                A.e(f"v_lshl_add_u32 {v(d)}, {v(tmp)}, 1, {v(d)}")
            else:
                A.e(f"v_bfe_u32 {v(d)}, {v(row)}, 1, 2")
        else:
            if self.order == 'nat':
                A.e(f"v_and_b32 {v(d)}, 3, {v(row)}")
                A.e(f"v_bfe_u32 {v(tmp)}, {v(row)}, 3, 1")
                A.e(f"v_lshl_add_u32 {v(d)}, {v(tmp)}, 2, {v(d)}")
            else:
                A.e(f"v_and_b32 {v(d)}, 7, {v(row)}")
    def dma(self, u, sm0):
        slot = self.lds_base + (u % self.nslots)*self.unit_bytes
        it = [(f"s_add_u32 m0, {s(sm0)}, {slot}", 1)]
        srd = self.srd(u) if callable(self.srd) else self.srd
        for j in range(self.npw):
            off = f" offset:{1024*j}" if j else ""
            it.append((f"buffer_load_dwordx4 {v(self.vdma+j)}, {s(srd,4)}, {s(self.soff)} offen{off} lds", 1, 'sep' if j == 0 else '', 'dma'))
        it.append((self.advance(u), 1))
        return it
    def advance(self, u):
        return adv_text(self, u)
    def reads(self, h, fk, fbase):
        slot = (h % self.nslots)*self.unit_bytes
        istep = (4 if self.order == 'nat' else 16)*self.NB
        out = []
        for j in range(self.nblk):
            for i in range(2):
                out.append(f"ds_read_b64_tr_b16 {R(fk, fbase+4*j+2*i, 2)}, {v(self.vrd+j)} offset:{slot+i*istep}")
        return out

class OpFrag:
    unit_ks = 1
    def __init__(self, name, tblk, gblk, nblk, nslots, lds_base, srd, soff, vdma, vrd, rowperm=False):
        self.name=name; self.tblk=tblk; self.gblk=gblk; self.nblk=nblk; self.nslots=nslots
        self.lds_base=lds_base; self.srd=srd; self.soff=soff; self.vdma=vdma; self.vrd=vrd
        self.unit_bytes = tblk*1024
        self.npw = tblk//4
        self.adv = gblk*1024
        self.rowperm = rowperm
    def setup(self, A, vlane, swave, sblkoff, vt, st):
        A.e(f"s_mul_i32 {s(st)}, {s(swave)}, {1024*self.npw}")
        A.e(f"v_lshlrev_b32 {v(vt)}, 4, {v(vlane)}")
        A.e(f"v_add_u32 {v(self.vdma)}, {s(st)}, {v(vt)}")
        A.e(f"s_lshl_b32 {s(st)}, {s(sblkoff)}, 10")
        A.e(f"s_add_u32 {s(st)}, {s(st)}, {self.lds_base}")
        if not self.rowperm:
            A.e(f"v_add_u32 {v(self.vrd)}, {s(st)}, {v(vt)}")
        else:
            t1, t2 = vt+1, vt+2
            A.e(f"v_bfe_u32 {v(t1)}, {v(vlane)}, 3, 1")
            A.e(f"v_lshlrev_b32 {v(t1)}, 10, {v(t1)}")
            A.e(f"v_bfe_u32 {v(t2)}, {v(vlane)}, 2, 1")
            A.e(f"v_lshl_add_u32 {v(t1)}, {v(t2)}, 7, {v(t1)}")
            A.e(f"v_and_b32 {v(t2)}, 3, {v(vlane)}")
            A.e(f"v_lshl_add_u32 {v(t1)}, {v(t2)}, 4, {v(t1)}")
            A.e(f"v_lshrrev_b32 {v(t2)}, 4, {v(vlane)}")
            A.e(f"v_lshl_add_u32 {v(t1)}, {v(t2)}, 8, {v(t1)}")
            A.e(f"v_add_u32 {v(self.vrd)}, {s(st)}, {v(t1)}")
    def dma(self, u, sm0):
        slot = self.lds_base + (u % self.nslots)*self.unit_bytes
        it = [(f"s_add_u32 m0, {s(sm0)}, {slot}", 1)]
        for j in range(self.npw):
            off = f" offset:{1024*j}" if j else ""
            it.append((f"buffer_load_dwordx4 {v(self.vdma)}, {s(self.srd,4)}, {s(self.soff)} offen{off} lds", 1, 'sep' if j == 0 else '', 'dma'))
        it.append((adv_text(self, u), 1))
        return it
    def reads(self, h, fk, fbase):
        slot = (h % self.nslots)*self.unit_bytes
        out = []
        for j in range(self.nblk):
            off = slot + (j*1024 if not self.rowperm else (j//2)*2048 + (j % 2)*64)
            out.append(f"ds_read_b128 {R(fk, fbase+4*j, 4)}, {v(self.vrd)} offset:{off}")
        return out

class OpRm:
    unit_ks = 2
    def __init__(self, name, GS, nblk, nslots, lds_base, srd, soff, vdma, vrd):
        self.name=name; self.GS=GS; self.nblk=nblk; self.nslots=nslots; self.lds_base=lds_base
        self.srd=srd; self.soff=soff
        self.vdma=vdma; self.vrd=vrd
        self.unit_bytes = 32768
        self.npw = 8
        self.adv = 128
    def setup(self, A, vlane, swave, sblkoff, vt, st):
        t0,t1,t2 = vt, vt+1, vt+2
        for j in range(4):
            A.e(f"s_lshl_b32 {s(st)}, {s(swave)}, 6")
            A.e(f"v_lshrrev_b32 {v(t0)}, 3, {v(vlane)}")
            A.e(f"v_add_u32 {v(t0)}, {s(st)}, {v(t0)}")
            if j: A.e(f"v_add_u32 {v(t0)}, {8*j}, {v(t0)}")
            A.e(f"v_bfe_u32 {v(t1)}, {v(t0)}, 1, 3")
            A.e(f"v_and_b32 {v(t2)}, 7, {v(vlane)}")
            A.e(f"v_xor_b32 {v(t1)}, {v(t1)}, {v(t2)}")
            A.e(f"v_lshlrev_b32 {v(t1)}, 4, {v(t1)}")
            A.e(f"s_mov_b32 {s(st)}, {self.GS}")
            A.e(f"v_mul_lo_u32 {v(t0)}, {v(t0)}, {s(st)}")
            A.e(f"v_add_u32 {v(self.vdma+j)}, {v(t0)}, {v(t1)}")
            if j: A.e(f"v_subrev_u32 {v(self.vdma+j)}, {1024*j}, {v(self.vdma+j)}")
        A.e(f"v_and_b32 {v(t0)}, 15, {v(vlane)}")
        A.e(f"v_lshrrev_b32 {v(t1)}, 1, {v(t0)}")
        A.e(f"v_lshrrev_b32 {v(t2)}, 4, {v(vlane)}")
        A.e(f"v_xor_b32 {v(t1)}, {v(t1)}, {v(t2)}")
        A.e(f"v_lshlrev_b32 {v(t1)}, 4, {v(t1)}")
        A.e(f"v_lshl_add_u32 {v(t0)}, {v(t0)}, 7, {v(t1)}")
        A.e(f"s_lshl_b32 {s(st)}, {s(sblkoff)}, 11")
        A.e(f"s_add_u32 {s(st)}, {s(st)}, {self.lds_base}")
        A.e(f"v_add_u32 {v(self.vrd)}, {s(st)}, {v(t0)}")
        A.e(f"v_xor_b32 {v(t0)}, 64, {v(t0)}")
        A.e(f"v_add_u32 {v(self.vrd+1)}, {s(st)}, {v(t0)}")
        if self.nslots > 2:
            A.e(f"v_add_u32 {v(self.vrd+2)}, 0x10000, {v(self.vrd)}")
            A.e(f"v_add_u32 {v(self.vrd+3)}, 0x10000, {v(self.vrd+1)}")
    def dma(self, u, sm0):
        slot = self.lds_base + (u % self.nslots)*self.unit_bytes
        it = []
        for grp in range(2):
            it.append((f"s_add_u32 m0, {s(sm0)}, {slot+4096*grp}", 1))
            for j in range(4):
                off = f" offset:{1024*j}" if j else ""
                it.append((f"buffer_load_dwordx4 {v(self.vdma+j)}, {s(self.srd,4)}, {s(self.soff+grp)} offen{off} lds", 1, 'sep' if j == 0 else '', 'dma'))
            it.append((adv_text(self, u, grp), 1))
        return it
    def reads(self, h, fk, fbase):
        sl = (h//2) % self.nslots
        st = h % 2
        base = self.vrd + st + (2 if sl >= 2 else 0)
        off0 = (sl % 2)*32768
        return [f"ds_read_b128 {R(fk, fbase+4*j, 4)}, {v(base)} offset:{off0+2048*j}" for j in range(self.nblk)]

class OpReg:
    unit_ks = 1
    isreg = True
    def __init__(self, name, nblk, nslots, srd, soff, vo, adv, fk, fbase):
        self.name=name; self.nblk=nblk; self.nslots=nslots; self.srd=srd; self.soff=soff
        self.vo=vo
        self.adv=adv; self.fk=fk; self.fbase=fbase
    def loc(self, u): return (self.fk, self.fbase + (u % self.nslots)*4*self.nblk)
    def free(self, u): return -1 if u < self.nslots else u - self.nslots + 1
    def dma(self, u, sm0):
        it = []
        for j in range(self.nblk):
            vr, imm = self.vo[j]
            off = f" offset:{imm}" if imm else ""
            it.append((f"buffer_load_dwordx4 {R(self.loc(u)[0], self.loc(u)[1]+4*j, 4)}, {v(vr)}, {s(self.srd,4)}, {s(self.soff)} offen{off}", 1, '', 'dma'))
        it.append((adv_text(self, u), 1))
        return it
    def reads(self, h, fk, fbase): return []

def flat(items):
    out = []
    for it in items:
        if len(it) > 2 and it[2] == 'sep': out.append("s_nop 0")
        out.append(it[0])
    return out

class Gemm:
    def __init__(self, H, opP, opQ, accreg, fragP, fragQ, sm0P, sm0Q, swap=False, P=1, rate=None, vm=None,
                 fk='a', zero_first=True):
        self.H=H; self.opP=opP; self.opQ=opQ; self.accreg=accreg
        self.fragP=fragP; self.fragQ=fragQ
        self.sm0 = {opP.name: sm0P, opQ.name: sm0Q}
        self.swap=swap; self.P=P; self.vm = vm or VM(); self.fk=fk
        self.rate = rate
        self.zero_first = zero_first
        self.nunits = {o.name: (H + o.unit_ks - 1)//o.unit_ks for o in (opP, opQ)}
        self.next = {opP.name: 0, opQ.name: 0}
        self.pending = []
    def need_bar(self, o, u):
        if getattr(o, 'isreg', False): return u if u > 0 else -1
        first = u*o.unit_ks
        hr = first - 1
        return -1 if hr < 0 else (hr // self.P)*self.P
    def free_bar(self, o, u):
        if getattr(o, 'isreg', False): return o.free(u)
        w = u - o.nslots
        if w < 0: return -1
        last = min((w+1)*o.unit_ks - 1, self.H - 1)
        return -(-last // self.P)*self.P
    def take(self, bar, ndma, h=None):
        out = []
        n = 0
        while n < ndma or (self.pending and 'dma' not in self.pending[0]):
            if not self.pending:
                cands = []
                for o in (self.opP, self.opQ):
                    u = self.next[o.name]
                    if u < self.nunits[o.name] and self.free_bar(o, u) <= (h if (getattr(o, 'isreg', False) and h is not None) else bar):
                        cands.append((self.need_bar(o, u), o.name, o, u))
                if not cands: break
                cands.sort(key=lambda x: (x[0], x[1]))
                _, _, o, u = cands[0]
                self.next[o.name] += 1
                self.pending = [it + ((o.name, u),) for it in o.dma(u, self.sm0[o.name])]
            it = self.pending[0]
            isd = 'dma' in it
            if isd and n >= ndma: break
            if (not isd) and it[0].startswith("s_add_u32 m0") and n >= ndma: break
            self.pending.pop(0)
            out.append(it)
            if isd:
                n += 1
                self.vm.issue(it[-1])
        return out
    def needed_tags(self, bar):
        tags = set()
        for o in (self.opP, self.opQ):
            for u in range(self.nunits[o.name]):
                if self.need_bar(o, u) <= bar: tags.add((o.name, u))
        return tags
    def prologue_issue(self, ndma=10**9):
        return flat(self.take(-1, ndma))
    def prologue_wait(self):
        out = []
        w = self.vm.wait(self.needed_tags(-1))
        if w: out.append(w)
        out.append("s_barrier")
        out += self.reads(0)
        return out
    def reads(self, h):
        st = h % 2
        rp = self.opP.reads(h, self.fk, self.fragP + st*4*self.opP.nblk)
        rq = self.opQ.reads(h, self.fk, self.fragQ + st*4*self.opQ.nblk)
        out = []
        np_, nq = len(rp), len(rq)
        i = j = 0
        while i < np_ or j < nq:
            if j >= nq or (i < np_ and i*nq <= j*np_): out.append(rp[i]); i += 1
            else: out.append(rq[j]); j += 1
        return out
    def mfmas(self, h):
        st = h % 2
        out = []
        for i in range(self.opP.nblk):
            for j in range(self.opQ.nblk):
                c = self.accreg(i, j)
                p = R(self.fk, self.fragP + st*4*self.opP.nblk + 4*i, 4)
                if getattr(self.opQ, 'isreg', False):
                    q = R(self.opQ.loc(h)[0], self.opQ.loc(h)[1] + 4*j, 4)
                else:
                    q = R(self.fk, self.fragQ + st*4*self.opQ.nblk + 4*j, 4)
                x, y = (q, p) if self.swap else (p, q)
                src = "0" if (h == 0 and self.zero_first) else c
                out.append(f"v_mfma_f32_16x16x32_bf16 {c}, {x}, {y}, {src}")
        return out
    def step(self, h, extra=None, extra_dma=None):
        out = ["s_waitcnt lgkmcnt(0)"]
        bar = (h // self.P)*self.P
        if h % self.P == 0 and h < self.H - 1:
            for o in (self.opP, self.opQ):
                for u in range(self.next[o.name], self.nunits[o.name]):
                    assert self.need_bar(o, u) > h, f"unit {o.name}{u} not issued in time (h={h})"
            if self.pending:
                t = self.pending[0][-1]
                o = self.opP if t[0] == self.opP.name else self.opQ
                assert self.need_bar(o, t[1]) > h or not any('dma' in x for x in self.pending), "partial unit late"
            w = self.vm.wait(self.needed_tags(h))
            if w: out.append(w)
            out.append("s_barrier")
        elif getattr(self.opQ, 'isreg', False):
            w = self.vm.wait({(self.opQ.name, h)})
            if w: out.append(w)
        mf = self.mfmas(h)
        n = len(mf)
        sts = []
        if h + 1 < self.H:
            sts.append(stream([(x, 1) for x in self.reads(h+1)], 0, (n*3)//4, ahead=1))
        rate = self.rate(h) if callable(self.rate) else self.rate
        items = self.take(bar, rate, h)
        if extra_dma:
            assert not any(x[0].endswith(" lds") for x in self.pending)
            items = items + extra_dma
            for it in extra_dma:
                if 'dma' in it: self.vm.issue(it[-1])
        if items: sts.append(stream(items, 0, n-1, ahead=1))
        if extra: sts.append(stream(extra, 0, n-1, ahead=2))
        gaps = schedule(n, sts)
        for i, m in enumerate(mf):
            out.append(m); out += gaps[i]
        return out

def emit_steps(A, steps, sloop, name, min_period=2, max_period=12):
    H = len(steps)
    best = None
    for p in range(min_period, max_period+1):
        for h0 in range(0, H - 2*p + 1):
            k = 1
            while h0 + (k+1)*p <= H and all(steps[h0+i] == steps[h0+k*p+i] for i in range(p)): k += 1
            saved = (k-1)*p
            if k > 1 and (best is None or saved > best[0]): best = (saved, h0, p, k)
    if best is None:
        for st in steps: A.es(st)
        return
    _, h0, p, k = best
    for st in steps[:h0]: A.es(st)
    A.e(f"s_mov_b32 {s(sloop)}, {k}")
    L = A.newlabel(name)
    A.label(L)
    for i, st in enumerate(steps[h0:h0+p]):
        if i == p-1:
            body = list(st)
            A.es(body)
            A.e(f"s_sub_u32 {s(sloop)}, {s(sloop)}, 1")
            A.e(f"s_cmp_lg_u32 {s(sloop)}, 0")
            A.e(f"s_cbranch_scc1 {L}")
        else:
            A.es(st)
    for st in steps[h0+k*p:]: A.es(st)

def iclass(text):
    t = text.lstrip()
    if t.startswith("s_"): return 0
    if t.startswith("ds_") or t.startswith("buffer_") or t.startswith("global_"): return 1
    return 2

class Item:
    def __init__(self, text, cost=1, due=0.0, lo=0, sep=False, after=(), aftersep=(), hi=None):
        self.text=text; self.cost=cost; self.due=due; self.lo=lo; self.sep=sep
        self.after=list(after); self.aftersep=list(aftersep); self.gap=None
        self.cls = iclass(text if isinstance(text, str) else text[0])
        self.hi = hi

def stream(items, lo, hi, ahead=None):
    out = []
    m = len(items)
    for k, it in enumerate(items):
        due = lo + k*(hi-lo)/max(m, 1)
        l = lo if ahead is None else max(lo, int(due - ahead))
        out.append(Item(it[0], it[1], due, l, len(it) > 2 and it[2] == 'sep'))
    return out

def schedule(n, streams, cap=2):
    vec = sum(it.cost for st in streams for it in st if it.cls)
    extra = max(0, vec - cap*n)
    gaps = [[] for _ in range(n)]
    ptr = [0]*len(streams)
    used_extra = 0
    placed = 0
    for i in range(n):
        c = cap
        need = (vec - placed) - cap*(n - i)
        quota = ((i+1)*extra + n - 1)//n
        if need > 0 and (used_extra < quota or need > extra - used_extra): c += 1
        last = i == n-1
        if last: c = 10**6
        load = 0; nsc = 0
        cur = []
        while True:
            cands = []
            for si, st in enumerate(streams):
                if ptr[si] >= len(st): continue
                it = st[ptr[si]]
                prev = st[ptr[si]-1] if ptr[si] else None
                if not last and it.lo > i: continue
                if any(d.gap is None for d in it.after + it.aftersep): continue
                preds = it.after + ([prev] if prev else [])
                if not last:
                    if it.sep and prev is not None and prev.gap == i: continue
                    if any(d.gap == i for d in it.aftersep): continue
                    if any(d.gap == i and d.cls > it.cls for d in preds): continue
                cost = it.cost if it.cls else (it.cost - 1 if nsc == 0 else it.cost)
                if it.cls == 0 and nsc and not last and it.due > i - 2: continue
                if load + cost > c: continue
                cands.append((it.due, si, cost))
            if not cands: break
            cands.sort()
            _, si, cost = cands[0]
            it = streams[si][ptr[si]]
            it.gap = i; ptr[si] += 1
            if it.hi is not None: assert i <= it.hi, f"item late: {it.text} at {i} > {it.hi}"
            cur.append(it); load += cost
            if it.cls: placed += it.cost
            else: nsc += 1
        if not last:
            cur.sort(key=lambda x: x.cls)
            for it in cur: gaps[i] += [it.text] if isinstance(it.text, str) else list(it.text)
        else:
            seen = []
            for it in cur:
                if (it.sep and seen) or any(d in seen for d in it.aftersep): gaps[i].append("s_nop 0")
                gaps[i] += [it.text] if isinstance(it.text, str) else list(it.text)
                seen.append(it)
        if load > cap: used_extra += load - cap
    assert all(ptr[si] == len(st) for si, st in enumerate(streams))
    return gaps
```

```python
import sys, math
from asmlib import *
from gemmlib import *

P_X, P_CKV, P_WQ, P_WUK, P_WUV, P_WO, P_BX, P_WIN, P_WSP, P_BSP, P_WOUT, P_OUT, P_DBG, P_WS = [8*i for i in range(14)]
WS_XN = 0;          SZ_XN = 18*128*1024
WS_KV = 0x400000;   SZ_KV = 32 << 20
WS_Z2 = 0x2400000;  SZ_Z2 = 64*144*1024
WS_ST = 0x2D00000;  SZ_ST = 0x100000
WS_Y  = 0x2E00000;  SZ_Y  = 200*128*1024
WS_PT = 0x4800000;  SZ_PT = 5*2048*576*4

WS_DIAG = 0x8000000
DIAG = False
ROT = True
def stamp(A, i):
    if not DIAG: return
    A.e(f"s_memrealtime {s(64+4*i,2)}")
    A.e(f"s_memtime {s(66+4*i,2)}")
def stamp_flush(A, n, wsp, slot):
    if not DIAG: return
    A.e("s_waitcnt vmcnt(0)")
    stamp(A, n)
    A.e("s_waitcnt lgkmcnt(0)")
    srd_ws(A, 60, wsp, WS_DIAG + slot*0x10000, 0x10000)
    A.e("v_cmp_eq_u32 vcc, 0, v0")
    A.e("s_and_saveexec_b64 s[58:59], vcc")
    A.e("s_lshl_b32 s57, s2, 6")
    A.e("v_mov_b32 v2, s57")
    for i in range(n+1):
        A.e(f"v_mov_b32 v4, {s(64+4*i)}")
        A.e(f"v_mov_b32 v5, {s(66+4*i)}")
        A.e(f"buffer_store_dwordx2 v[4:5], v2, s[60:63], 0 offen offset:{8*i}")
        A.e("s_nop 1")
    A.e("s_mov_b64 exec, s[58:59]")

def srd_ws(A, d, wsp, off, size):
    A.e(f"s_add_u32 {s(d)}, {s(wsp)}, {off}")
    A.e(f"s_addc_u32 {s(d+1)}, {s(wsp+1)}, 0")
    A.e(f"s_and_b32 {s(d+1)}, {s(d+1)}, 0xffff")
    A.e(f"s_mov_b32 {s(d+2)}, {size}")
    A.e(f"s_mov_b32 {s(d+3)}, 0x00020000")

def lane_wave(A, vlane, swave, vt):
    A.e(f"v_lshrrev_b32 {v(vt)}, 6, v0")
    A.e(f"v_and_b32 {v(vlane)}, 63, v0")
    A.e(f"v_readfirstlane_b32 {s(swave)}, {v(vt)}")
    A.e("s_nop 3")

def reduce_g(A, x, t, op="v_add_f32"):
    A.e(f"v_mov_b32 {v(t)}, {v(x)}")
    A.e("s_nop 1")
    A.e(f"v_permlane16_swap_b32 {v(t)}, {v(x)}")
    A.e("s_nop 1")
    A.e(f"{op} {v(x)}, {v(x)}, {v(t)}")
    A.e(f"v_mov_b32 {v(t)}, {v(x)}")
    A.e("s_nop 1")
    A.e(f"v_permlane32_swap_b32 {v(t)}, {v(x)}")
    A.e("s_nop 1")
    A.e(f"{op} {v(x)}, {v(x)}, {v(t)}")

def round_bf16(A, x):
    A.e(f"v_cvt_pk_bf16_f32 {v(x)}, {v(x)}, {v(x)}")
    A.e(f"v_and_b32 {v(x)}, 0xffff0000, {v(x)}")

def ln_coeffs(A, vsum, vsq, n, vrs, vmr, t):
    A.e(f"v_mul_f32 {v(vsum)}, {1.0/n!r}, {v(vsum)}")
    A.e(f"v_mul_f32 {v(vsq)}, {1.0/n!r}, {v(vsq)}")
    A.e(f"v_fma_f32 {v(vsq)}, -{v(vsum)}, {v(vsum)}, {v(vsq)}")
    A.e(f"v_max_f32 {v(vsq)}, 0, {v(vsq)}")
    round_bf16(A, vsq)
    A.e(f"v_add_f32 {v(vsq)}, 0x3727c5ac, {v(vsq)}")
    round_bf16(A, vsq)
    A.e(f"v_sqrt_f32 {v(vsq)}, {v(vsq)}")
    A.e("s_nop 0")
    round_bf16(A, vsq)
    A.e(f"v_rcp_f32 {v(vrs)}, {v(vsq)}")
    round_bf16(A, vsum)
    A.e(f"v_mul_f32 {v(vmr)}, {v(vsum)}, {v(vrs)}")
    A.e(f"v_sub_f32 {v(vmr)}, 0, {v(vmr)}")

def k_ln(A):
    name = "ln_kernel"
    A.kernel_begin(name)
    A.e("s_cmp_ge_u32 s2, 32")
    A.e("s_cbranch_scc1 ln_end")
    A.e(f"s_load_dwordx2 s[4:5], s[0:1], {P_X}")
    A.e(f"s_load_dwordx2 s[6:7], s[0:1], {P_WS}")
    lane_wave(A, 1, 20, 2)
    A.e("s_waitcnt lgkmcnt(0)")
    A.srd(8, 4, 2048*576*2)
    srd_ws(A, 12, 6, WS_XN, SZ_XN)
    A.e("s_lshl_b32 s21, s2, 2")
    A.e("s_add_u32 s21, s21, s20")
    A.e("v_and_b32 v2, 15, v1")
    A.e("v_mul_u32_u24 v2, 1152, v2")
    A.e("v_lshrrev_b32 v3, 4, v1")
    A.e("v_lshl_add_u32 v2, v3, 4, v2")
    A.e(f"s_mul_i32 s22, s21, {16*1152}")
    for ks in range(18):
        A.e(f"buffer_load_dwordx4 {v(8+4*ks,4)}, v2, s[8:11], s22 offen offset:{64*ks}")
    A.e("s_mov_b32 s23, 0x3f803f80")
    for r in (4,5,6,7): A.e(f"v_mov_b32 v{r}, 0")
    A.e("s_waitcnt vmcnt(0)")
    for r in range(72):
        A.e(f"v_dot2_f32_bf16 v{4+r%2}, v{8+r}, s23, v{4+r%2}")
        A.e(f"v_dot2_f32_bf16 v{6+r%2}, v{8+r}, v{8+r}, v{6+r%2}")
    A.e("s_nop 2")
    A.e("v_add_f32 v4, v4, v5")
    A.e("v_add_f32 v6, v6, v7")
    reduce_g(A, 4, 5)
    reduce_g(A, 6, 7)
    ln_coeffs(A, 4, 6, 576, 5, 7, 3)
    A.e("v_lshlrev_b32 v2, 4, v1")
    A.e("s_lshl_b32 s22, s21, 10")
    for ks in range(18):
        for r in range(8+4*ks, 12+4*ks):
            A.e(f"v_lshlrev_b32 v80, 16, v{r}")
            A.e(f"v_and_b32 v81, 0xffff0000, v{r}")
            A.e(f"v_fma_f32 v80, v80, v5, v7")
            A.e(f"v_fma_f32 v81, v81, v5, v7")
            A.e(f"v_cvt_pk_bf16_f32 v{r}, v80, v81")
        A.e(f"buffer_store_dwordx4 {v(8+4*ks,4)}, v2, s[12:15], s22 offen")
        A.e(f"s_add_u32 s22, s22, {128*1024}")
    A.label("ln_end")
    A.e("s_endpgm")
    return (name, 32, 0, descriptor(name, 88, 32, 88))

def acc_kv(i, j):
    b = i*8 + j
    return v(32+4*b, 4) if b < 56 else a(128+4*(b-56), 4)
def acc_kv_idx(i, j):
    b = i*8 + j
    return ('v', 32+4*b) if b < 56 else ('a', 128+4*(b-56))

def pack_pair(A, b0, b1, dst, tmp):
    for n, (k, r) in enumerate((b0, b1)):
        if k == 'a':
            for q in range(4): A.e(f"v_accvgpr_read_b32 {v(tmp+q)}, {a(r+q)}")
            r = tmp
        A.e(f"v_cvt_pk_bf16_f32 {v(dst+2*n)}, {v(r)}, {v(r+1)}")
        A.e(f"v_cvt_pk_bf16_f32 {v(dst+2*n+1)}, {v(r+2)}, {v(r+3)}")

def k_kv(A):
    name = "kv_kernel"
    A.kernel_begin(name)
    A.e("s_cmp_ge_u32 s2, 256")
    A.e("s_cbranch_scc1 kv_end")
    stamp(A, 0)
    A.e(f"s_load_dwordx2 s[4:5], s[0:1], {P_CKV}")
    A.e(f"s_load_dwordx4 s[36:39], s[0:1], {P_WUK}")
    A.e(f"s_load_dwordx2 s[8:9], s[0:1], {P_WS}")
    lane_wave(A, 1, 30, 2)
    A.e("s_and_b32 s33, s2, 7")
    A.e("s_lshl_b32 s33, s33, 2")
    A.e("s_bfe_u32 s35, s2, 0x20003")
    A.e("s_add_u32 s35, s35, s33")
    A.e("s_lshr_b32 s40, s2, 5")
    A.e("s_and_b32 s41, s35, 15")
    A.e("s_waitcnt lgkmcnt(0)")
    A.e("s_cmp_lt_u32 s35, 16")
    A.e("s_cselect_b32 s6, s36, s38")
    A.e("s_cselect_b32 s7, s37, s39")
    A.srd(12, 4, 2048*512*2)
    A.srd(16, 6, 512*4096*2)
    srd_ws(A, 20, 8, WS_KV, SZ_KV)
    opW = OpTr("W", 512, 8192, 'nat', 8, 4, 0, 16, 24, 2, 6)
    opX = OpRm("X", 1024, 8, 3, 65536, 12, 26, 14, 18)
    A.e("s_lshl_b32 s24, s41, 9")
    A.e("s_lshl_b32 s26, s40, 18")
    A.e(f"s_add_u32 s27, s26, {32*1024}")
    A.e("s_lshl_b32 s28, s30, 12")
    A.e("s_lshl_b32 s29, s30, 13")
    A.e("s_and_b32 s31, s30, 1")
    A.e("s_lshr_b32 s32, s30, 1")
    A.e("s_lshl_b32 s31, s31, 3")
    A.e("s_lshl_b32 s32, s32, 3")
    if ROT:
        A.e("s_add_u32 s43, s40, s35")
        A.e("s_and_b32 s43, s43, 3")
        A.e("s_lshl_b32 s43, s43, 1")
        rot_setup(A, opW, 8, 44, 43, 33)
        rot_setup(A, opX, 8, 52, 43, 33)
    opW.setup(A, 1, 30, 31, 22, 33)
    opX.setup(A, 1, 30, 32, 22, 33)
    A.e("s_lshl_b32 s42, s41, 1")
    A.e("s_lshr_b32 s33, s31, 3")
    A.e("s_add_u32 s42, s42, s33")
    A.e("s_lshl_b32 s42, s42, 20")
    A.e("s_lshl_b32 s33, s40, 17")
    A.e("s_add_u32 s42, s42, s33")
    A.e("s_lshl_b32 s33, s32, 13")
    A.e("s_add_u32 s42, s42, s33")
    A.e("s_cmp_lt_u32 s35, 16")
    A.e("s_cbranch_scc0 kv_v")
    for isv in (0, 1):
        if isv: A.label("kv_v")
        G = Gemm(16, opW, opX, acc_kv, 0, 64, 28, 29, swap=bool(isv), rate=lambda h: 8 if h > 3 else 12)
        stamp(A, 1)
        A.es(G.prologue_issue(16))
        A.es(G.prologue_wait())
        stamp(A, 2)
        steps = [G.step(h) for h in range(16)]
        emit_steps(A, steps, 34, "kvl")
        stamp(A, 3)
        A.e("s_nop 7")
        A.e("v_lshlrev_b32 v1, 4, v1")
        n = 0
        for o in range(4):
            for q in range(8):
                d = 2 + 4*(n % 4); n += 1
                if not isv:
                    j = 2*o + q//4; t = q % 4
                    pack_pair(A, acc_kv_idx(2*t, j), acc_kv_idx(2*t+1, j), d, 20)
                else:
                    pack_pair(A, acc_kv_idx(q, 2*o), acc_kv_idx(q, 2*o+1), d, 20)
                if q % 4 == 0:
                    A.e(f"s_add_u32 s33, s42, {o*16384 + isv*8192 + (q//4)*4096}")
                A.e(f"buffer_store_dwordx4 {v(d,4)}, v1, s[20:23], s33 offen offset:{(q%4)*1024}")
        stamp(A, 4)
        stamp_flush(A, 5, 8, 1)
        A.e("s_endpgm")
    A.label("kv_end")
    A.e("s_endpgm")
    return (name, 256, 163840, descriptor(name, 416, 96, 256))

def build(kernels):
    A = Asm()
    info = []
    for k in kernels: info.append(k(A))
    head = "".join(f"; @launch kernel={n} grid=({g},1,1) block=(256,1,1) lds={l}\n" for n, g, l, _ in info)
    head += '.amdgcn_target "amdgcn-amd-amdhsa--gfx950"\n'
    return head + A.text() + "".join(d for _, _, _, d in info)

import re as _re
MACROS = """.macro M d,x,y,c
v_mfma_f32_16x16x32_bf16 \\d,\\x,\\y,\\c
.endm
.macro R4 d,x,o
ds_read_b128 \\d,\\x offset:\\o
.endm
.macro RT d,x,o
ds_read_b64_tr_b16 \\d,\\x offset:\\o
.endm
.macro CV d,x,y
v_cvt_pk_bf16_f32 \\d,\\x,\\y
.endm
.macro AR d,x
v_accvgpr_read_b32 \\d,\\x
.endm
.macro AW d,x
v_accvgpr_write_b32 \\d,\\x
.endm
.macro DL x,r,s,o
buffer_load_dwordx4 \\x,\\r,\\s offen offset:\\o lds
.endm
"""
def compact(txt):
    out = []
    for l in txt.split("\n"):
        if l.startswith(";") or l.startswith("."):
            out.append(l)
            if l.startswith(".amdgcn_target"): out.append(MACROS.rstrip())
            continue
        l = l.strip()
        m = _re.fullmatch(r"v_mfma_f32_16x16x32_bf16 (\S+), (\S+), (\S+), (\S+)", l)
        if m: l = "M %s,%s,%s,%s" % m.groups()
        m = _re.fullmatch(r"ds_read_b128 (\S+), (\S+) offset:(\d+)", l)
        if m: l = "R4 %s,%s,%s" % m.groups()
        m = _re.fullmatch(r"ds_read_b64_tr_b16 (\S+), (\S+) offset:(\d+)", l)
        if m: l = "RT %s,%s,%s" % m.groups()
        m = _re.fullmatch(r"v_cvt_pk_bf16_f32 (\S+), (\S+), (\S+)", l)
        if m: l = "CV %s,%s,%s" % m.groups()
        m = _re.fullmatch(r"v_accvgpr_read_b32 (\S+), (\S+)", l)
        if m: l = "AR %s,%s" % m.groups()
        m = _re.fullmatch(r"v_accvgpr_write_b32 (\S+), (\S+)", l)
        if m: l = "AW %s,%s" % m.groups()
        m = _re.fullmatch(r"buffer_load_dwordx4 (v\d+), (\S+), (\S+) offen(?: offset:(\d+))? lds", l)
        if m: l = "DL %s,%s,%s,%s" % (m.group(1), m.group(2), m.group(3), m.group(4) or "0")
        out.append(l.replace(", ", ","))
    return "\n".join(out)

if __name__ == "__main__":
    DIAG = "diag" in sys.argv
    ks = [k_ln, k_kv]
    open(sys.argv[1] if len(sys.argv) > 1 else "k.s", "w").write(build(ks))
```

```python
import re, sys
TRANS = ("v_exp_f32","v_log_f32","v_rcp_f32","v_rsq_f32","v_sqrt_f32","v_sin_f32","v_cos_f32")
def regs(tok):
    tok = tok.strip().lstrip('-')
    tok = tok.replace("abs(","").replace(")","").replace("|","")
    m = re.fullmatch(r"([vas])(\d+)", tok)
    if m: return {(m.group(1), int(m.group(2)))}
    m = re.fullmatch(r"([vas])\[(\d+):(\d+)\]", tok)
    if m: return {(m.group(1), i) for i in range(int(m.group(2)), int(m.group(3))+1)}
    if tok == "vcc": return {('s', 'vcc')}
    if tok == "m0": return {('s', 'm0')}
    if tok == "exec": return {('s', 'exec')}
    return set()
def parse(line):
    line = line.split(';')[0].strip()
    if not line or line.endswith(':') or line.startswith('.'): return None
    p = line.split(None, 1)
    op = p[0]
    for suf in ("_e32","_e64"):
        if op.endswith(suf): op = op[:-4]
    ops = [x.strip() for x in p[1].split(',')] if len(p) > 1 else []
    if ops: ops[-1] = ops[-1].split()[0] if ops[-1] else ops[-1]
    I = dict(op=op, line=line, w=set(), r=set(), kind='other')
    R = [regs(x) for x in ops]
    U = lambda l: set().union(*l) if l else set()
    if op.startswith("v_mfma"):
        I.update(kind='mfma', w=R[0], ab=R[1]|R[2], c=R[3], r=R[1]|R[2]|R[3])
    elif op.startswith("v_cmp"):
        I.update(kind='valu', w=R[0], r=U(R[1:]))
    elif op.startswith("v_readfirstlane") or op.startswith("v_readlane"):
        I.update(kind='valu', w=R[0], r=U(R[1:]), rl=True)
    elif op.startswith("v_permlane"):
        I.update(kind='valu', w=R[0]|R[1], r=R[0]|R[1], perm=True)
    elif op.startswith("v_"):
        r = U(R[1:])
        if op in ("v_fmac_f32","v_dot2c_f32_bf16"): r |= R[0]
        if op == "v_cndmask_b32" and len(ops) == 3: r |= {('s','vcc')}
        I.update(kind='valu', w=R[0], r=r, trans=op in TRANS, dpp='dpp' in line or 'row_' in line)
    elif op.startswith("ds_read"):
        I.update(kind='mem', w=R[0], r=U(R[1:]))
    elif op.startswith("ds_"):
        I.update(kind='mem', r=U(R))
    elif op.startswith("buffer_load") or op.startswith("global_load"):
        if line.endswith(" lds"): I.update(kind='mem', r=U(R), dma=True)
        else: I.update(kind='mem', w=R[0], r=U(R[1:]))
    elif op.startswith("buffer_store") or op.startswith("global_store") or op.startswith("buffer_atomic"):
        I.update(kind='mem', r=U(R), sdata=R[0] if op.endswith("x4") or op.endswith("x3") else set())
    elif op.startswith("s_"):
        I.update(kind='salu', w=R[0] if R and not op.startswith("s_cmp") else set(), r=U(R[1:]))
        if op == "s_nop": I['n'] = int(ops[0]) + 1
    return I
def check(lines, name=""):
    ins = [x for x in map(parse, lines) if x]
    errs = []
    for i, c in enumerate(ins):
        d = 0
        for j in range(i-1, max(-1, i-12), -1):
            p = ins[j]
            def bad(need, why):
                if d < need: errs.append(f"{name}: {why}: '{p['line']}' -> '{c['line']}' dist {d} < {need}")
            vw = {x for x in p['w'] if x[0] in 'va'}
            sw = {x for x in p['w'] if x[0] == 's'}
            if p['kind'] == 'valu':
                if c['kind'] == 'mfma' and vw & c['r']: bad(2, "valu->mfma")
                if p.get('trans') and c['kind'] == 'valu' and not c.get('trans') and vw & c['r']: bad(1, "trans->valu")
                if c.get('perm') and vw & c['r']: bad(2, "valu->permlane")
                if c.get('dpp') and vw & c['r']: bad(2, "valu->dpp")
                if c.get('rl') and vw & c['r']: bad(1, "valu->readlane")
                if c['kind'] == 'valu' and sw & c['r']: bad(2, "valu sgpr->valu")
                if c['kind'] == 'mem' and sw & c['r']: bad(5, "valu sgpr->vmem")
            if p['kind'] == 'mfma':
                if c['kind'] == 'valu' and vw & (c['r'] | c['w']): bad(8, "mfma->valu")
                if c['kind'] == 'mem' and vw & (c['r'] | c['w']): bad(8, "mfma->mem")
                if c['kind'] == 'mfma':
                    if vw & c['ab']: bad(8, "mfma->mfma ab")
                    if vw & c['c'] and vw != c['c']: bad(6, "mfma->mfma c overlap")
                if c['kind'] == 'valu' and p['c'] & c['w']: bad(3, "mfma srcC WAR")
            if p['kind'] == 'salu' and ('s','m0') in p['w'] and c.get('dma'): bad(1, "m0->dma")
            if p.get('sdata') and c['kind'] == 'valu' and p['sdata'] & c['w']: bad(2, "store data WAR")
            d += p.get('n', 1)
            if p['op'] in ("s_branch", "s_endpgm", "s_setpc_b64"): break
    return errs
if __name__ == "__main__":
    e = check(open(sys.argv[1]).read().split('\n'))
    print("\n".join(e[:40])); print(len(e), "violations")
```

```python
from asmlib import *
from gemmlib import *
import gen
from gen import *
import attn, bbranch as bb
from attn import S_WAVE, S_J, S_H

def k_mid(A):
    name = "mid_kernel"
    A.kernel_begin(name)
    A.e("s_cmp_ge_u32 s2, 352")
    A.e("s_cbranch_scc0 mid_go")
    A.e("s_endpgm")
    A.label("mid_go")
    stamp(A, 0)
    A.e(f"s_load_dwordx2 s[4:5], s[0:1], {P_WQ}")
    A.e(f"s_load_dwordx2 s[8:9], s[0:1], {P_WS}")
    lane_wave(A, 1, S_WAVE, 2)
    A.e("s_lshr_b32 s3, s2, 3")
    A.e("s_sub_u32 s33, s3, 4")
    A.e("s_cmp_lt_u32 s33, 12")
    A.e("s_cbranch_scc0 mid_attn")
    A.e("s_and_b32 s31, s2, 1")
    A.e("s_lshl_b32 s31, s31, 2")
    A.e("s_and_b32 s3, s33, 3")
    A.e("s_add_u32 s31, s31, s3")
    A.e("s_bfe_u32 s32, s2, 0x20001")
    A.e("s_mul_i32 s32, s32, 3")
    A.e("s_lshr_b32 s33, s33, 2")
    A.e("s_add_u32 s32, s32, s33")
    A.e("s_waitcnt lgkmcnt(0)")
    bb.g_task(A, S_WAVE, 31, 32, 8, 2)
    A.label("mid_attn")
    A.e("s_cmp_lt_u32 s3, 4")
    A.e("s_cselect_b32 s33, 0, 12")
    A.e("s_sub_u32 s3, s3, s33")
    A.e("s_and_b32 s33, s2, 7")
    A.e("s_lshl_b32 s33, s33, 2")
    A.e(f"s_and_b32 {s(S_H)}, s3, 3")
    A.e(f"s_add_u32 {s(S_H)}, {s(S_H)}, s33")
    A.e("s_lshr_b32 s3, s3, 2")
    A.e(f"s_sub_u32 {s(S_J)}, 7, s3")
    A.e("s_waitcnt lgkmcnt(0)")
    attn.attn_task(A, 8, 4, 2)
    return (name, 352, 163840, descriptor(name, 512, 102, 256))
```

```python
import sys, gen, attn, bbranch as bb, mid, hazcheck
gen.DIAG = "diag" in sys.argv
ks = [gen.k_ln, gen.k_kv, bb.k_z2, bb.k_norm, mid.k_mid, bb.k_fin, bb.k_red]
txt = gen.build(ks)
e = hazcheck.check(txt.split("\n"))
print(len(e), "hazards"); print("\n".join(e[:20]))
open(sys.argv[1] + ".full", "w").write(txt)
open(sys.argv[1], "w").write(gen.compact(txt))
```
